```python
import torch

def _softmax(x, axis=-1):
    return torch.softmax(x, dim=axis)
def _gelu(x):
    return torch.nn.functional.gelu(x, approximate="tanh")
def _silu(x):
    return torch.nn.functional.silu(x)
def _sigmoid(x):
    return torch.sigmoid(x)
def _layernorm(x, axis=-1, eps=1e-5):
    m = x.mean(dim=axis, keepdim=True)
    v = x.var(dim=axis, keepdim=True, unbiased=False)
    return (x - m) / torch.sqrt(v + eps)
def _scatter_add(tgt, idx, src, axis=0):
    return tgt.clone().index_add_(axis, idx, src)
def _segment_sum(src, seg, n):
    out = torch.zeros((n,) + src.shape[1:], dtype=src.dtype)
    return out.index_add_(0, seg, src)
def _pad(x, pw):
    flat = tuple(v for pair in reversed(pw) for v in pair)
    return torch.nn.functional.pad(x, flat)

kernel_name = 'gather_scatter__edge_featured_mpnn_egc__graph'

def setup_inputs():

    _w = (lambda a: (lambda t: t.to(torch.bfloat16) if t.is_floating_point() else t)(torch.as_tensor(a)))
    N, deg, D, De = 10000, 16, 128, max(0, 1)
    E = N * deg
    return {
        "x": _w((lambda *s: torch.randn(*s, dtype=torch.bfloat16) * 0.1)(N, D)),
        "e_attr": _w((lambda *s: torch.randn(*s, dtype=torch.bfloat16) * 0.1)(E, De)),
        "src": _w((lambda lo, hi, *s: torch.randint(lo, hi, s))(0, N, E).to(torch.int64)),
        "dst": _w((lambda lo, hi, *s: torch.randint(lo, hi, s))(0, N, E).to(torch.int64)),
        "u_w": _w((lambda *s: torch.randn(*s, dtype=torch.bfloat16) * 0.05)(D, D)),
        "v_w": _w((lambda *s: torch.randn(*s, dtype=torch.bfloat16) * 0.05)(D, D)),
        "g_w": _w((lambda *s: torch.randn(*s, dtype=torch.bfloat16) * 0.1)(2 * D + De, D)),
    }

def reference(x, e_attr, src, dst, u_w, v_w, g_w):
    N, D = x.shape
    g_in = torch.concatenate([x[dst], x[src], e_attr], axis=-1)
    eta = _sigmoid(g_in @ g_w)
    hv = x @ v_w
    msg = eta * hv[src]
    agg = _segment_sum(msg, dst, N)
    return _silu(x @ u_w + agg)
```

```python
class Asm:
    def __init__(self):
        self.lines = []
        self.uid = 0
    def __call__(self, s=""):
        for ln in s.split("\n"):
            ln = ln.strip()
            if not ln:
                continue
            if ln.endswith(":") or ln.startswith("."):
                self.lines.append(ln)
            else:
                self.lines.append("    " + ln)
    def c(self, s):
        self.lines.append("    ; " + s)
    def label(self, base):
        self.uid += 1
        return f"L_{base}_{self.uid}"
    def text(self):
        return "\n".join(self.lines) + "\n"

def v(i, n=1):
    return f"v{i}" if n == 1 else f"v[{i}:{i+n-1}]"
def s(i, n=1):
    return f"s{i}" if n == 1 else f"s[{i}:{i+n-1}]"
```

```python
import sys
from asmlib import Asm, v, s

NAME = "gather_scatter__edge_featured_mpnn_egc__graph"
N, E = 10000, 160000
SLICE = 10240 * 128
SLOT0 = 4 * SLICE
SCAP = 72
SLOTB = 384
BLKB = 64 * SLOTB
WS_USED = SLOT0 + 64 * BLKB
STAMP0 = 0x800000
NCAP = 48
LSTR = 196
NLOG2E = 0xBFB8AA3B
P = 8

opts = dict(a.split("=") for a in sys.argv[2:])
DIAG = int(opts.get("diag", 0))
PREF_X = int(opts.get("prefx", 1))
PREF_T = int(opts.get("preft", 1))
PRIO = int(opts.get("prio", 1))

A = Asm()

sX, sE, sSRC, sDST, sU, sV, sG, sOUT, sWS, sTAB = 4, 8, 12, 16, 20, 24, 28, 32, 36, 40
sW, sXC, sJ, sF, sP, sB = 44, 45, 46, 47, 48, 49
sL2E = 50
sT0 = 52
sM = 64
sST = 80

def srd(reg, karg, nbytes):
    A(f"s_load_dwordx2 {s(reg,2)}, s[0:1], {karg}")
    A(f"s_mov_b32 {s(reg+2)}, {nbytes}")
    A(f"s_mov_b32 {s(reg+3)}, 0x20000")

nst = [0]
def stamp():
    if DIAG:
        k = nst[0]; nst[0] += 1
        A(f"s_memrealtime {s(sST+2*k,2)}")
        A("s_waitcnt lgkmcnt(0)")

def dump_stamps(kidx):
    if DIAG:
        A("s_mov_b64 exec, 1")
        A(f"s_lshl_b32 {s(sT0)}, s2, 4")
        A(f"s_add_u32 {s(sT0)}, {s(sT0)}, {s(sW)}")
        A(f"s_lshl_b32 {s(sT0)}, {s(sT0)}, 6")
        A(f"s_add_u32 {s(sT0)}, {s(sT0)}, {STAMP0 + kidx*0x40000}")
        A("v_mov_b32 v1, 0")
        for k in range(10):
            A(f"v_mov_b32 v2, {s(sST+2*k)}")
            A(f"buffer_store_dword v2, v1, {s(sWS,4)}, {s(sT0)} offen offset:{4*k}")
        nst[0] = 0

def zero_stamps():
    if DIAG:
        for k in range(10):
            A(f"s_mov_b64 {s(sST+2*k,2)}, 0")

def ids():
    A(f"""
    v_lshrrev_b32 v1, 6, v0
    s_and_b32 {s(sXC)}, s2, 7
    v_readfirstlane_b32 {s(sW)}, v1
    s_lshr_b32 {s(sJ)}, s2, 3
    s_and_b32 {s(sF)}, s2, 3
    s_bfe_u32 {s(sP)}, s2, 0x10002
    s_lshl_b32 {s(sB)}, {s(sP)}, 5
    s_add_u32 {s(sB)}, {s(sB)}, {s(sJ)}
    s_mov_b32 {s(sL2E)}, {NLOG2E}
    s_mov_b32 {s(sL2E+1)}, {NLOG2E}
    v_and_b32 v1, 63, v0
    """)

WF, XF, AC = 8, 40, 88
def gemm_core(vWa, vXa, w_sstride, w_hstride, w_mstride, skip3):
    def rdW(st):
        for m in range(2):
            for hh in range(2):
                A(f"ds_read_b64_tr_b16 {v(WF+16*m+4*st+2*hh,2)}, {v(vWa)} offset:{m*w_mstride+st*w_sstride+hh*w_hstride}")
    def rdX(t, st):
        A(f"ds_read_b128 {v(XF+16*t+4*st,4)}, {v(vXa+st)} offset:{t*4096}")
    def mm(t, st):
        for m in range(2):
            acc = v(AC+8*t+4*m, 4)
            A(f"v_mfma_f32_16x16x32_bf16 {acc}, {v(WF+16*m+4*st,4)}, {v(XF+16*t+4*st,4)}, {acc if st else 0}")
    for st in range(3):
        rdW(st); rdX(0, st)
    A("s_waitcnt lgkmcnt(10)"); mm(0, 0)
    rdW(3); rdX(0, 3)
    A("s_waitcnt lgkmcnt(10)"); mm(0, 1)
    for st in range(4): rdX(1, st)
    A("s_waitcnt lgkmcnt(9)"); mm(0, 2)
    for st in range(4): rdX(2, st)
    A("s_waitcnt lgkmcnt(8)"); mm(0, 3)
    A("s_waitcnt lgkmcnt(4)")
    for st in range(4): mm(1, st)
    A("s_waitcnt lgkmcnt(0)")
    A(f"s_cmp_ge_u32 {s(sW)}, 4")
    A(f"s_cbranch_scc1 {skip3}")
    for st in range(4): mm(2, st)
    A(f"{skip3}:")

def x_frag_addr(vXa, base_sgpr):
    A(f"""
    v_and_b32 v2, 15, v1
    v_lshrrev_b32 v3, 4, v1
    v_xor_b32 {v(vXa)}, v2, v3
    v_lshlrev_b32 {v(vXa)}, 4, {v(vXa)}
    v_lshl_or_b32 {v(vXa)}, v2, 8, {v(vXa)}
    """)
    for st in range(1, 4):
        A(f"v_xor_b32 {v(vXa+st)}, {st*64}, {v(vXa)}")
    for st in range(4):
        A(f"v_add_u32 {v(vXa+st)}, {s(base_sgpr)}, {v(vXa+st)}")

def prep_kernel():
    CNT, IMG, XL, WB = 0, 256, 8192, 32768
    WV = WB + 16384
    LDS = WV + 16384
    sC, sQB, sH, sB0 = sT0+4, sT0+5, sT0+6, sT0+7
    A(".p2align 8")
    A("prep_kernel:")
    A("s_cmp_ge_u32 s2, 256")
    A("s_cbranch_scc1 L_prep_end")
    zero_stamps()
    stamp()
    srd(sDST, 24, E*4); srd(sSRC, 16, E*4); srd(sE, 8, E*2)
    srd(sG, 48, 257*256); srd(sV, 40, 128*256); srd(sX, 0, N*256)
    srd(sWS, 72, STAMP0 + 0x100000 if DIAG else WS_USED); srd(sU, 32, 128*256)
    ids()
    A(f"""
    s_lshr_b32 {s(sC)}, {s(sJ)}, 2
    s_lshl3_add_u32 {s(sC)}, {s(sXC)}, {s(sC)}
    s_and_b32 {s(sQB)}, {s(sJ)}, 3
    s_and_b32 {s(sH)}, {s(sJ)}, 1
    s_and_b32 {s(sB0)}, {s(sB)}, 62
    s_mul_i32 {s(sT0)}, {s(sC)}, 10000
    s_mul_i32 {s(sT0+1)}, {s(sC)}, 5000
    v_lshlrev_b32 v2, 4, v0
    v_lshlrev_b32 v3, 3, v0
    """)
    A(f"""
    v_lshrrev_b32 v5, 3, v1
    v_and_b32 v6, 2, v5
    s_and_b32 {s(sT0+2)}, {s(sW)}, 1
    s_lshl_b32 {s(sT0+2)}, {s(sT0+2)}, 2
    v_or_b32 v6, {s(sT0+2)}, v6
    v_and_b32 v4, 7, v1
    v_xor_b32 v4, v4, v6
    v_lshlrev_b32 v4, 4, v4
    v_lshl_or_b32 v4, v5, 8, v4
    s_lshl_b32 {s(sT0+2)}, {s(sW)}, 11
    s_lshl_b32 {s(sT0+3)}, {s(sH)}, 7
    s_add_u32 {s(sT0+2)}, {s(sT0+2)}, {s(sT0+3)}
    s_add_u32 {s(sT0+3)}, {s(sT0+2)}, 32768
    """)
    A(f"""
    v_lshrrev_b32 v6, 4, v0
    v_xor_b32 v5, v6, v1
    v_and_b32 v5, 15, v5
    v_lshlrev_b32 v5, 4, v5
    v_and_b32 v7, 1, v6
    v_lshl_or_b32 v5, v7, 8, v5
    v_lshrrev_b32 v7, 1, v6
    v_lshl_or_b32 v5, v7, 14, v5
    s_mul_i32 {s(sT0+8)}, {s(sF)}, {40*64*256}
    s_lshl_b32 {s(sT0+9)}, {s(sB0)}, 8
    s_add_u32 {s(sT0+8)}, {s(sT0+8)}, {s(sT0+9)}
    s_movk_i32 {s(sT0+9)}, 625
    v_cmp_gt_u32 {s(sM+8,2)}, {s(sT0+9)}, v0
    s_lshl_b32 {s(sT0+10)}, {s(sW)}, 10
    s_waitcnt lgkmcnt(0)
    s_cmp_ge_u32 {s(sW)}, 10
    s_cbranch_scc1 L_prep_noedge
    s_mov_b64 exec, {s(sM+8,2)}
    buffer_load_dwordx4 v[8:11], v2, {s(sDST,4)}, {s(sT0)} offen
    buffer_load_dwordx4 v[12:15], v2, {s(sSRC,4)}, {s(sT0)} offen
    buffer_load_dwordx2 v[16:17], v3, {s(sE,4)}, {s(sT0+1)} offen
    s_mov_b64 exec, -1
    L_prep_noedge:
    s_add_u32 m0, {s(sT0+10)}, {WB}
    s_nop 0
    buffer_load_dwordx4 v4, {s(sG,4)}, {s(sT0+3)} offen lds
    s_add_u32 m0, {s(sT0+10)}, {WV}
    s_nop 0
    buffer_load_dwordx4 v4, {s(sV,4)}, {s(sT0+2)} offen lds
    s_add_u32 m0, {s(sT0+10)}, {XL}
    s_nop 0
    buffer_load_dwordx4 v5, {s(sX,4)}, {s(sT0+8)} offen lds
    s_cmp_lt_u32 {s(sW)}, 10
    s_cbranch_scc1 L_prep_b0
    """)
    A(f"""
    s_cmp_lt_u32 {s(sW)}, 12
    s_cbranch_scc1 L_prep_init
    s_add_u32 m0, {s(sT0+10)}, {XL+4096}
    s_add_u32 {s(sT0+9)}, {s(sT0+8)}, {8*64*256}
    buffer_load_dwordx4 v5, {s(sX,4)}, {s(sT0+9)} offen lds
    L_prep_init:
    v_mov_b32 v8, -1
    v_mov_b32 v9, -1
    v_mov_b32 v10, -1
    v_mov_b32 v11, -1
    v_subrev_u32 v2, {640*16}, v2
    v_mov_b32 v12, 0
    v_lshlrev_b32 v13, 2, v1
    ds_write_b128 v2, v[8:11] offset:{IMG}
    ds_write_b32 v13, v12 offset:{CNT}
    s_waitcnt lgkmcnt(0)
    L_prep_b0:
    s_barrier
    """)
    stamp()
    A(f"""
    s_cmp_ge_u32 {s(sW)}, 10
    s_cbranch_scc1 L_prep_b1
    s_mov_b64 exec, {s(sM+8,2)}
    v_mov_b32 v18, 1
    s_movk_i32 {s(sT0)}, {SLOTB}
    s_mov_b32 {s(sT0+1)}, 0xffff0000
    s_waitcnt vmcnt(5)
    """)
    for i in range(4):
        A(f"""
        v_bfe_u32 v19, {v(8+i)}, 4, 2
        v_and_b32 {v(20+i)}, 15, {v(8+i)}
        v_cmp_eq_u32 {s(sM+2*i,2)}, {s(sQB)}, v19
        v_lshlrev_b32 {v(24+i)}, 2, {v(20+i)}
        """)
    for i in range(4):
        A(f"s_mov_b64 exec, {s(sM+2*i,2)}")
        A(f"ds_add_rtn_u32 {v(24+i)}, {v(24+i)}, v18 offset:{CNT}")
    A(f"s_mov_b64 exec, {s(sM+8,2)}")
    for i in range(4):
        A(f"v_lshrrev_b32 {v(8+i)}, 6, {v(8+i)}")
        A(f"v_mul_u32_u24 {v(20+i)}, {s(sT0)}, {v(20+i)}")
    A("s_waitcnt vmcnt(3)")
    A(f"""
    v_lshl_or_b32 v12, v16, 16, v12
    v_and_or_b32 v13, v16, {s(sT0+1)}, v13
    v_lshl_or_b32 v14, v17, 16, v14
    v_and_or_b32 v15, v17, {s(sT0+1)}, v15
    s_movk_i32 {s(sT0)}, -380
    s_movk_i32 {s(sT0+1)}, {SCAP}
    """)
    A("s_waitcnt lgkmcnt(0)")
    for i in range(4):
        A(f"""
        v_mul_u32_u24 v19, 171, {v(24+i)}
        v_lshl_add_u32 {v(20+i)}, {v(24+i)}, 4, {v(20+i)}
        v_lshrrev_b32 v19, 12, v19
        v_cmp_gt_u32 vcc, {s(sT0+1)}, {v(24+i)}
        v_mad_i32_i24 {v(20+i)}, v19, {s(sT0)}, {v(20+i)}
        v_mad_i32_i24 {v(24+i)}, v19, -3, {v(20+i)}
        s_and_b64 exec, vcc, {s(sM+2*i,2)}
        ds_write_b32 {v(20+i)}, {v(12+i)} offset:{IMG}
        ds_write_b8 {v(24+i)}, {v(8+i)} offset:{IMG+12}
        s_mov_b64 exec, {s(sM+8,2)}
        """)
    A(f"""
    s_mov_b64 exec, -1
    s_waitcnt lgkmcnt(0)
    L_prep_b1:
    s_barrier
    """)
    stamp()
    A(f"""
    s_cmp_lt_u32 {s(sW)}, 10
    s_cbranch_scc1 L_prep_nost
    v_subrev_u32 v3, 640, v0
    v_mul_u32_u24 v3, 171, v3
    v_lshrrev_b32 v3, 12, v3
    v_lshlrev_b32 v12, 2, v3
    ds_read_b128 v[8:11], v2 offset:{IMG}
    ds_read_b32 v12, v12 offset:{CNT}
    s_mul_i32 {s(sT0)}, {s(sQB)}, {16*BLKB}
    s_mul_i32 {s(sT0+1)}, {s(sC)}, {SLOTB}
    s_add_u32 {s(sT0)}, {s(sT0)}, {s(sT0+1)}
    s_add_u32 {s(sT0)}, {s(sT0)}, {SLOT0}
    s_movk_i32 {s(sT0+1)}, {BLKB-SLOTB}
    v_mad_u32_u24 v2, v3, {s(sT0+1)}, v2
    v_mov_b32 v13, 0xfffefefe
    s_waitcnt lgkmcnt(0)
    v_cmp_lt_u32 vcc, {SCAP}, v12
    s_nop 1
    v_cndmask_b32 v11, v11, v13, vcc
    s_nop 0
    buffer_store_dwordx4 v[8:11], v2, {s(sWS,4)}, {s(sT0)} offen sc1
    s_waitcnt vmcnt(1)
    s_barrier
    """)
    stamp(); nst[0] -= DIAG
    A(f"""
    s_branch L_prep_pref
    L_prep_nost:
    """)
    A(f"""
    s_lshr_b32 {s(sT0)}, {s(sW)}, 2
    s_mul_i32 {s(sT0+1)}, {s(sT0)}, {3*4096}
    s_add_u32 {s(sT0+1)}, {s(sT0+1)}, {XL}
    """)
    x_frag_addr(4, sT0+1)
    A(f"""
    v_bfe_u32 v113, v1, 3, 2
    s_and_b32 {s(sT0+2)}, {s(sW)}, 3
    v_xor_b32 v113, {s(sT0+2)}, v113
    v_and_b32 v112, 3, v1
    v_lshlrev_b32 v112, 3, v112
    v_lshl_or_b32 v112, v113, 5, v112
    v_bfe_u32 v113, v1, 2, 2
    v_lshl_or_b32 v112, v113, 7, v112
    v_lshl_or_b32 v112, v3, 10, v112
    v_add_u32 v112, {WB}, v112
    """)
    A(f"""
    v_lshrrev_b32 v113, 1, v2
    v_lshlrev_b32 v113, 13, v113
    v_and_b32 v2, 1, v2
    v_lshl_or_b32 v113, v2, 7, v113
    v_lshl_or_b32 v113, v3, 4, v113
    s_lshr_b32 {s(sT0+3)}, {s(sT0+2)}, 1
    s_lshl1_add_u32 {s(sT0+3)}, {s(sH)}, {s(sT0+3)}
    s_mul_i32 {s(sT0+3)}, {s(sT0+3)}, {SLICE}
    s_lshr_b32 {s(sT0+9)}, {s(sT0+8)}, 1
    s_add_u32 {s(sT0+3)}, {s(sT0+3)}, {s(sT0+9)}
    s_mul_i32 {s(sT0+9)}, {s(sT0)}, {3*65536}
    s_add_u32 {s(sT0+3)}, {s(sT0+3)}, {s(sT0+9)}
    s_and_b32 {s(sT0+9)}, {s(sW)}, 1
    s_lshl_b32 {s(sT0+9)}, {s(sT0+9)}, 6
    s_add_u32 {s(sT0+3)}, {s(sT0+3)}, {s(sT0+9)}
    s_waitcnt vmcnt(0)
    s_barrier
    """)
    stamp()
    A(f"""
    s_cmp_ge_u32 {s(sW)}, 8
    s_cbranch_scc1 L_prep_pref
    """)
    gemm_core(112, 4, 4096, 512, 16384, "L_prep_skip3")
    def epi(t):
        a = AC + 8*t
        d = XF + 16*t
        A(f"""
        v_pk_mul_f32 {v(a,2)}, {v(a,2)}, {s(sL2E,2)}
        v_pk_mul_f32 {v(a+2,2)}, {v(a+2,2)}, {s(sL2E,2)}
        v_cvt_pk_bf16_f32 {v(d+2)}, {v(a+4)}, {v(a+5)}
        v_cvt_pk_bf16_f32 {v(d+3)}, {v(a+6)}, {v(a+7)}
        v_cvt_pk_bf16_f32 {v(d)}, {v(a)}, {v(a+1)}
        v_cvt_pk_bf16_f32 {v(d+1)}, {v(a+2)}, {v(a+3)}
        s_nop 0
        buffer_store_dwordx4 {v(d,4)}, v113, {s(sWS,4)}, {s(sT0+3)} offen sc1
        s_add_u32 {s(sT0+3)}, {s(sT0+3)}, 65536
        """)
    epi(0); epi(1)
    A(f"s_cmp_ge_u32 {s(sW)}, 4")
    A("s_cbranch_scc1 L_prep_fin")
    epi(2)
    A("s_branch L_prep_fin")
    A("L_prep_pref:")
    if PREF_X:
        A(f"""
        s_cmp_ge_u32 {s(sW)}, 13
        s_cbranch_scc1 L_prep_pref2
        v_subrev_u32 v2, 512, v0
        v_lshrrev_b32 v3, 1, v2
        v_and_b32 v2, 1, v2
        v_lshlrev_b32 v2, 7, v2
        v_lshl_or_b32 v2, v3, 14, v2
        s_lshl_b32 {s(sT0)}, {s(sB)}, 8
        buffer_load_dword v3, v2, {s(sX,4)}, {s(sT0)} offen
        s_branch L_prep_fin
        L_prep_pref2:
        s_cmp_gt_u32 {s(sW)}, 13
        s_cbranch_scc1 L_prep_fin
        s_mov_b64 exec, 15
        v_lshlrev_b32 v2, 8, v1
        s_lshl_b32 {s(sT0)}, {s(sJ)}, 10
        s_lshl_b32 {s(sT0+1)}, {s(sF)}, 6
        s_add_u32 {s(sT0)}, {s(sT0)}, {s(sT0+1)}
        buffer_load_dword v3, v2, {s(sG,4)}, {s(sT0)} offen
        buffer_load_dword v4, v2, {s(sU,4)}, {s(sT0)} offen
        """)
    A("L_prep_fin:")
    if DIAG:
        stamp()
        A("s_waitcnt vmcnt(0)")
        stamp()
        dump_stamps(0)
    A("L_prep_end:")
    A("s_endpgm")
    return LDS

def main_kernel():
    CNT, HIST, ORDER, FLAG, LIST = 0, 768, 1024, 1792, 2048
    XAU = LIST + 32768
    XAS = 272
    XL = XAU + 160*XAS
    WA = XL + 160*256
    WU = WA + 8192
    LDS = WU + 8192 + 4096
    vC, vXA, vN, vD, vI, vP0, vEe, vL, vO = 4, 8, 12, 16, 20, 22, 26, 28, 29
    vT, vMm, vEx, vN1, vDAT = 32, 40, 48, 52, 64
    vCraw = 116
    sBA, sTR, sFL = sT0+8, sT0+9, sT0+10
    A(".p2align 8")
    A(f"{NAME}_kernel:")
    A("s_cmp_ge_u32 s2, 256")
    A("s_cbranch_scc1 L_main_end")
    zero_stamps()
    stamp()
    srd(sWS, 72, STAMP0 + 0x100000 if DIAG else WS_USED); srd(sX, 0, N*256)
    srd(sG, 48, 257*256); srd(sU, 32, 128*256); srd(sOUT, 56, N*256)
    srd(sDST, 24, E*4); srd(sSRC, 16, E*4); srd(sE, 8, E*2)
    ids()
    A(f"""
    s_mov_b32 {s(sTAB+2)}, {N}
    s_mov_b32 {s(sTAB+3)}, 0x20000
    s_mul_i32 {s(sT0+4)}, {s(sF)}, {SLICE}
    v_and_b32 v2, 7, v1
    v_lshlrev_b32 v2, 3, v2
    s_lshl_b32 {s(sT0+5)}, {s(sF)}, 6
    s_add_u32 {s(sT0+6)}, {s(sT0+5)}, 65536
    s_cmp_ge_u32 {s(sW)}, 8
    s_cbranch_scc1 L_main_hi
    """)
    A(f"""
    v_lshrrev_b32 v6, 4, v0
    v_xor_b32 v5, v6, v1
    v_and_b32 v5, 15, v5
    v_lshlrev_b32 v5, 4, v5
    v_lshl_or_b32 v5, v6, 14, v5
    v_lshrrev_b32 v6, 2, v0
    v_bfe_u32 v7, v1, 5, 1
    v_lshlrev_b32 v7, 1, v7
    v_and_b32 v4, 3, v1
    v_xor_b32 v4, v4, v7
    v_lshlrev_b32 v4, 4, v4
    v_lshl_or_b32 v4, v6, 8, v4
    s_lshl_b32 {s(sT0)}, {s(sW)}, 10
    s_lshl_b32 {s(sT0+1)}, {s(sB)}, 8
    s_add_u32 m0, {s(sT0)}, {WA}
    s_waitcnt lgkmcnt(0)
    buffer_load_dwordx2 {v(vCraw,2)}, v2, {s(sG,4)}, {s(sT0+6)} offen
    buffer_load_dwordx4 v4, {s(sG,4)}, {s(sT0+5)} offen lds
    s_add_u32 m0, {s(sT0)}, {WU}
    s_nop 0
    buffer_load_dwordx4 v4, {s(sU,4)}, {s(sT0+5)} offen lds
    """)
    for i in range(5):
        A(f"s_add_u32 m0, {s(sT0)}, {XL + i*8192}")
        A(f"s_add_u32 {s(sT0+2)}, {s(sT0+1)}, {i*32*64*256}")
        A(f"buffer_load_dwordx4 v5, {s(sX,4)}, {s(sT0+2)} offen lds")
    A("s_branch L_main_init")
    A(f"""
    L_main_hi:
    v_lshlrev_b32 v3, 4, v1
    s_mul_i32 {s(sT0)}, {s(sB)}, {BLKB}
    s_mul_i32 {s(sT0+1)}, {s(sW)}, 3072
    s_add_u32 {s(sT0)}, {s(sT0)}, {s(sT0+1)}
    s_add_u32 {s(sT0)}, {s(sT0)}, {SLOT0 - 8*3072}
    v_lshlrev_b32 v5, 7, v1
    s_lshl3_add_u32 {s(sT0+1)}, {s(sJ)}, {s(sW)}
    s_sub_u32 {s(sT0+1)}, {s(sT0+1)}, 8
    s_mul_i32 {s(sT0+1)}, {s(sT0+1)}, {40*128}
    s_add_u32 {s(sT0+1)}, {s(sT0+1)}, {s(sT0+4)}
    s_waitcnt lgkmcnt(0)
    buffer_load_dwordx2 {v(vCraw,2)}, v2, {s(sG,4)}, {s(sT0+6)} offen
    """)
    for i in range(3):
        A(f"buffer_load_dwordx4 {v(8+4*i,4)}, v3, {s(sWS,4)}, {s(sT0)} offen offset:{1024*i}")
    A(f"""
    L_main_init:
    s_add_u32 {s(sTAB)}, {s(sWS)}, {s(sT0+4)}
    s_addc_u32 {s(sTAB+1)}, {s(sWS+1)}, 0
    s_or_b32 {s(sTAB+1)}, {s(sTAB+1)}, 0x800000
    v_mov_b32 v20, 0xffff
    v_mov_b32 v21, v20
    v_mov_b32 v22, v20
    v_mov_b32 v23, v20
    v_lshlrev_b32 v6, 4, v0
    ds_write_b128 v6, v[20:23] offset:{LIST}
    ds_write_b128 v6, v[20:23] offset:{LIST+16384}
    s_cmp_ge_u32 {s(sW)}, 8
    s_cbranch_scc1 L_main_hi2
    v_mov_b32 v20, 0
    v_lshlrev_b32 v6, 2, v0
    ds_write_b32 v6, v20
    """)
    A(f"""
    s_lshr_b32 {s(sT0)}, {s(sW)}, 1
    s_mul_i32 {s(sT0)}, {s(sT0)}, 3
    s_and_b32 {s(sT0+1)}, {s(sW)}, 6
    s_add_u32 {s(sT0+1)}, {s(sT0+1)}, 2
    s_cmp_lt_u32 {s(sW)}, 4
    s_cselect_b32 {s(sT0)}, {s(sT0)}, {s(sT0+1)}
    s_lshl_b32 {s(sT0+1)}, {s(sT0)}, 12
    s_add_u32 {s(sT0+1)}, {s(sT0+1)}, {XL}
    """)
    x_frag_addr(4, sT0+1)
    A(f"""
    s_and_b32 {s(sT0+2)}, {s(sW)}, 1
    v_and_b32 v113, 1, v3
    v_xor_b32 v113, {s(sT0+2)}, v113
    v_and_b32 v112, 3, v1
    v_lshlrev_b32 v112, 3, v112
    v_lshl_or_b32 v112, v113, 5, v112
    v_bfe_u32 v113, v1, 2, 2
    v_lshl_or_b32 v112, v113, 6, v112
    v_lshl_or_b32 v112, v3, 9, v112
    v_add_u32 v112, {WA}, v112
    s_mul_i32 {s(sT0+1)}, {s(sT0)}, {16*XAS}
    s_lshl_b32 {s(sT0+2)}, {s(sT0+2)}, 6
    s_add_u32 {s(sT0+1)}, {s(sT0+1)}, {s(sT0+2)}
    s_add_u32 {s(sT0+1)}, {s(sT0+1)}, {XAU}
    v_mul_u32_u24 v113, {XAS}, v2
    v_lshl_add_u32 v113, v3, 4, v113
    v_add_u32 v113, {s(sT0+1)}, v113
    s_waitcnt vmcnt(0) lgkmcnt(0)
    s_barrier
    """)
    stamp()
    gemm_core(112, 4, 2048, 256, 8192, "L_main_skip3")
    def epi(t):
        a = AC + 8*t
        A(f"""
        v_pk_mul_f32 {v(a,2)}, {v(a,2)}, {s(sL2E,2)}
        v_pk_mul_f32 {v(a+2,2)}, {v(a+2,2)}, {s(sL2E,2)}
        ds_write_b128 v113, {v(a+4,4)} offset:{t*16*XAS+128}
        ds_write_b128 v113, {v(a,4)} offset:{t*16*XAS}
        """)
    epi(0)
    A("s_nop 3")
    epi(1)
    A(f"s_cmp_ge_u32 {s(sW)}, 4")
    A("s_cbranch_scc1 L_main_b2")
    epi(2)
    A("s_branch L_main_b2")
    A("L_main_hi2:")
    npf = 0
    if PREF_T:
        A(f"""
        s_mov_b32 exec_hi, 0xff
        buffer_load_dword v118, v5, {s(sWS,4)}, {s(sT0+1)} offen
        s_mov_b64 exec, -1
        """)
        npf = 1
    A(f"""
    v_mov_b32 v24, 1
    v_mov_b32 v25, 2
    v_mov_b32 v26, {LSTR}
    s_movk_i32 {s(sT0)}, 0xfe
    s_mov_b64 {s(sM+6,2)}, 0
    s_waitcnt lgkmcnt(0)
    s_barrier
    """)
    nst[0] -= DIAG
    stamp()
    for i in range(3):
        d = 8 + 4*i
        A(f"s_waitcnt vmcnt({2-i+npf})")
        for p in range(3):
            A(f"v_cmp_gt_u32_sdwa {s(sM+2*p,2)}, {s(sT0)}, {v(d+3)} src0_sel:DWORD src1_sel:BYTE_{p}")
            A(f"v_lshlrev_b32_sdwa {v(28+p)}, v25, {v(d+3)} dst_sel:DWORD dst_unused:UNUSED_PAD src0_sel:DWORD src1_sel:BYTE_{p}")
        A(f"v_cmp_eq_u32_sdwa vcc, {s(sT0)}, {v(d+3)} src0_sel:DWORD src1_sel:BYTE_0")
        for p in range(3):
            A(f"s_mov_b64 exec, {s(sM+2*p,2)}")
            A(f"ds_add_rtn_u32 {v(28+p)}, {v(28+p)}, v24 offset:{CNT}")
        A("s_mov_b64 exec, -1")
        A(f"s_or_b64 {s(sM+6,2)}, {s(sM+6,2)}, vcc")
        for p in range(3):
            A(f"v_mul_u32_u24_sdwa {v(32+p)}, v26, {v(d+3)} dst_sel:DWORD dst_unused:UNUSED_PAD src0_sel:DWORD src1_sel:BYTE_{p}")
        A("s_waitcnt lgkmcnt(0)")
        for p in range(3):
            A(f"""
            v_cmp_gt_u32 vcc, {NCAP}, {v(28+p)}
            v_lshl_add_u32 {v(32+p)}, {v(28+p)}, 2, {v(32+p)}
            s_and_b64 exec, vcc, {s(sM+2*p,2)}
            ds_write_b32 {v(32+p)}, {v(d+p)} offset:{LIST}
            s_mov_b64 exec, -1
            """)
    A(f"""
    s_mov_b64 exec, {s(sM+6,2)}
    v_mov_b32 v28, 0
    ds_write_b32 v28, v24 offset:{FLAG}
    s_mov_b64 exec, -1
    L_main_b2:
    s_waitcnt lgkmcnt(0)
    s_barrier
    """)
    stamp()
    A(f"""
    s_cmp_lg_u32 {s(sW)}, 0
    s_cbranch_scc1 L_main_nosort
    v_lshlrev_b32 v2, 2, v1
    ds_read_b32 v8, v2 offset:{CNT}
    ds_read_b32 v9, v2 offset:{CNT+256}
    ds_read_b32 v10, v2 offset:{CNT+512}
    v_mov_b32 v24, 1
    s_mov_b32 {s(sM)}, -1
    s_mov_b32 {s(sM+1)}, 0
    s_waitcnt lgkmcnt(0)
    v_max3_u32 v3, v8, v9, v10
    """)
    for k in range(3):
        A(f"v_min_u32 {v(8+k)}, 63, {v(8+k)}")
        A(f"v_sub_u32 {v(12+k)}, 63, {v(8+k)}")
        A(f"v_lshlrev_b32 {v(12+k)}, 2, {v(12+k)}")
    A(f"""
    ds_add_rtn_u32 v16, v12, v24 offset:{HIST}
    ds_add_rtn_u32 v17, v13, v24 offset:{HIST}
    s_mov_b64 exec, {s(sM,2)}
    ds_add_rtn_u32 v18, v14, v24 offset:{HIST}
    s_mov_b64 exec, -1
    ds_read_b32 v19, v2 offset:{HIST}
    v_cmp_lt_u32 vcc, {NCAP}, v3
    v_lshl_or_b32 v8, v8, 8, v1
    v_lshl_or_b32 v9, v9, 8, v1
    v_lshl_or_b32 v10, v10, 8, v1
    v_add_u32 v9, 64, v9
    v_add_u32 v10, 128, v10
    v_mov_b32 v3, 0
    s_mov_b64 exec, vcc
    ds_write_b32 v3, v24 offset:{FLAG}
    s_mov_b64 exec, -1
    s_waitcnt lgkmcnt(0)
    v_mov_b32 v20, v19
    s_nop 1
    v_add_u32_dpp v20, v20, v20 row_shr:1 row_mask:0xf bank_mask:0xf bound_ctrl:1
    s_nop 1
    v_add_u32_dpp v20, v20, v20 row_shr:2 row_mask:0xf bank_mask:0xf bound_ctrl:1
    s_nop 1
    v_add_u32_dpp v20, v20, v20 row_shr:4 row_mask:0xf bank_mask:0xf bound_ctrl:1
    s_nop 1
    v_add_u32_dpp v20, v20, v20 row_shr:8 row_mask:0xf bank_mask:0xf bound_ctrl:1
    s_nop 1
    v_add_u32_dpp v20, v20, v20 row_bcast:15 row_mask:0xa bank_mask:0xf
    s_nop 1
    v_add_u32_dpp v20, v20, v20 row_bcast:31 row_mask:0xc bank_mask:0xf
    v_sub_u32 v20, v20, v19
    ds_bpermute_b32 v12, v12, v20
    ds_bpermute_b32 v13, v13, v20
    ds_bpermute_b32 v14, v14, v20
    s_waitcnt lgkmcnt(0)
    v_add_lshl_u32 v12, v12, v16, 2
    v_add_lshl_u32 v13, v13, v17, 2
    v_add_lshl_u32 v14, v14, v18, 2
    ds_write_b32 v12, v8 offset:{ORDER}
    ds_write_b32 v13, v9 offset:{ORDER}
    s_mov_b64 exec, {s(sM,2)}
    ds_write_b32 v14, v10 offset:{ORDER}
    s_mov_b64 exec, -1
    L_main_nosort:
    """)
    A(f"""
    v_lshlrev_b32 {v(vC)}, 16, {v(vCraw)}
    v_and_b32 {v(vC+1)}, 0xffff0000, {v(vCraw)}
    v_lshlrev_b32 {v(vC+2)}, 16, {v(vCraw+1)}
    v_and_b32 {v(vC+3)}, 0xffff0000, {v(vCraw+1)}
    v_pk_mul_f32 {v(vC,2)}, {v(vC,2)}, {s(sL2E,2)}
    v_pk_mul_f32 {v(vC+2,2)}, {v(vC+2,2)}, {s(sL2E,2)}
    v_and_b32 v2, 1, v1
    v_lshlrev_b32 v2, 4, v2
    v_mov_b32 v3, 0x3f80
    v_lshlrev_b32 v3, v2, v3
    v_and_b32 v2, 2, v1
    v_cmp_eq_u32 vcc, 0, v2
    v_and_b32 v2, 7, v1
    v_lshlrev_b32 {v(vP0+1)}, 4, v2
    v_cndmask_b32 {v(vI)}, 0, v3, vcc
    v_sub_u32 {v(vI+1)}, v3, {v(vI)}
    v_mov_b32 {v(vP0+3)}, {v(vP0+1)}
    v_mov_b32 {v(vEe)}, 0
    v_mov_b32 {v(vEe+1)}, 0
    v_lshrrev_b32 v30, 3, v1
    v_lshlrev_b32 v30, 2, v30
    s_xor_b32 {s(sT0)}, {s(sW)}, 3
    s_bitcmp1_b32 {s(sW)}, 2
    s_cselect_b32 {s(sBA)}, {s(sT0)}, {s(sW)}
    s_lshl_b32 {s(sT0+7)}, {s(sB)}, 8
    s_add_u32 {s(sT0+7)}, {s(sT0+7)}, {s(sT0+5)}
    s_waitcnt lgkmcnt(0)
    s_barrier
    """)
    stamp()
    if PRIO:
        A(f"""
        s_cmp_lt_u32 {s(sW)}, 12
        s_cbranch_scc1 L_main_batch
        s_setprio 1
        """)
    A(f"""
    L_main_batch:
    s_lshl_b32 {s(sT0)}, {s(sBA)}, 5
    v_add_u32 v2, {s(sT0)}, v30
    v_mov_b32 v3, 0
    ds_read_b32 v31, v2 offset:{ORDER}
    ds_read_b32 v3, v3 offset:{FLAG}
    """)
    for k in range(P):
        A(f"v_mov_b32 {v(vDAT+4*k+1)}, {v(vP0+1)}")
    for k in range(4):
        A(f"v_mov_b32 {v(vD+k)}, 1.0")
    A(f"""
    s_waitcnt lgkmcnt(0)
    v_readfirstlane_b32 {s(sTR)}, v31
    v_readfirstlane_b32 {s(sFL)}, v3
    v_and_b32 v31, 0xff, v31
    v_mul_u32_u24 {v(vL)}, {LSTR}, v31
    v_mul_u32_u24 v2, {XAS}, v31
    v_add_u32 v2, v2, {v(vP0+1)}
    """)
    for k in range(P):
        A(f"ds_read_u16 {v(vDAT+4*k)}, {v(vL)} offset:{LIST+4*k}")
    A(f"""
    ds_read_b128 {v(vXA,4)}, v2 offset:{XAU}
    ds_read_b128 {v(vN,4)}, v2 offset:{XAU+128}
    ds_read_u16_d16_hi {v(vEe)}, {v(vL)} offset:{LIST+2}
    ds_read_u16_d16_hi {v(vEe+1)}, {v(vL)} offset:{LIST+6}
    ds_read_u16 {v(vP0)}, {v(vL)} offset:{LIST+4*P}
    ds_read_u16 {v(vP0+2)}, {v(vL)} offset:{LIST+4*P+4}
    v_lshrrev_b32 {v(vO)}, 1, {v(vP0+1)}
    v_lshl_or_b32 {v(vO)}, v31, 14, {v(vO)}
    s_lshr_b32 {s(sTR)}, {s(sTR)}, 8
    s_cmp_lg_u32 {s(sFL)}, 0
    s_cbranch_scc1 L_scan
    """)
    for k in range(P):
        A(f"s_waitcnt lgkmcnt({P-1-k+6})")
        A(f"buffer_load_dwordx4 {v(vDAT+4*k,4)}, {v(vDAT+4*k,2)}, {s(sTAB,4)}, 0 idxen offen")
    def T(st):
        t = vT + 4*(st % 2)
        sel = "op_sel:[1,0,0] op_sel_hi:[1,1,1]" if st % 2 else "op_sel_hi:[0,1,1]"
        A(f"v_pk_fma_f32 {v(t,2)}, {v(vEe,2)}, {v(vC,2)}, {v(vXA,2)} {sel}")
        A(f"v_pk_fma_f32 {v(t+2,2)}, {v(vEe,2)}, {v(vC+2,2)}, {v(vXA+2,2)} {sel}")
    def M1(st):
        t = vT + 4*(st % 2); d = vDAT + 4*(st % P)
        A(f"v_mfma_f32_4x4x4_16b_bf16 {v(t,4)}, {v(vI,2)}, {v(d,2)}, {v(t,4)}")
    def M2(st):
        m = vMm + 4*(st % 2); d = vDAT + 4*(st % P)
        A(f"v_mfma_f32_4x4x4_16b_bf16 {v(m,4)}, {v(vI,2)}, {v(d+2,2)}, 0")
    def Ld(st):
        A(f"buffer_load_dwordx4 {v(vDAT+4*(st%P),4)}, {v(vP0+2*(st%2),2)}, {s(sTAB,4)}, 0 idxen offen")
    A(f"""
    s_max_u32 {s(sT0)}, {s(sTR)}, 1
    s_sub_u32 {s(sT0)}, {s(sT0)}, 1
    s_waitcnt lgkmcnt(0)
    """)
    T(0); T(1)
    A(f"ds_read_u16_d16_hi {v(vEe)}, {v(vL)} offset:{LIST+4*2+2}")
    A(f"s_waitcnt vmcnt({P-1})")
    M1(0); M2(0)
    A("s_nop 1")
    Ld(P)
    A("s_nop 0")
    A("L_loop:")
    for k in range(P):
        z = vT + 4*(k % 2); m = vMm + 4*(k % 2)
        A(f"s_waitcnt vmcnt({P-1})")
        M1(k+1)
        A(f"v_exp_f32 {v(vEx)}, {v(z)}")
        M2(k+1)
        A(f"v_exp_f32 {v(vEx+1)}, {v(z+1)}")
        A(f"v_exp_f32 {v(vEx+2)}, {v(z+2)}")
        A(f"v_exp_f32 {v(vEx+3)}, {v(z+3)}")
        A("s_waitcnt lgkmcnt(0)")
        Ld(k+1+P)
        T(k+2)
        A(f"ds_read_u16 {v(vP0+2*(k%2))}, {v(vL)} offset:{LIST+4*(k+2+P)}")
        A(f"ds_read_u16_d16_hi {v(vEe+(k+1)%2)}, {v(vL)} offset:{LIST+4*(k+3)+2}")
        for h in range(2):
            A(f"v_pk_fma_f32 {v(vN1+2*h,2)}, {v(m+2*h,2)}, {v(vD+2*h,2)}, {v(vN+2*h,2)}")
        for h in range(2):
            A(f"v_pk_fma_f32 {v(vD+2*h,2)}, {v(vD+2*h,2)}, {v(vEx+2*h,2)}, {v(vD+2*h,2)}")
        for h in range(2):
            A(f"v_pk_fma_f32 {v(vN+2*h,2)}, {v(vN+2*h,2)}, {v(vEx+2*h,2)}, {v(vN1+2*h,2)}")
        A(f"s_sub_u32 {s(sT0)}, {s(sT0)}, 1")
        if k < P-1:
            A("s_cbranch_scc1 L_loop_done")
        else:
            A(f"v_add_u32 {v(vL)}, {4*P}, {v(vL)}")
            A("s_cbranch_scc0 L_loop")
    A(f"""
    L_loop_done:
    v_rcp_f32 {v(vEx)}, {v(vD)}
    v_rcp_f32 {v(vEx+1)}, {v(vD+1)}
    v_rcp_f32 {v(vEx+2)}, {v(vD+2)}
    v_rcp_f32 {v(vEx+3)}, {v(vD+3)}
    v_pk_add_f32 {v(vD,2)}, {v(vD,2)}, {v(vD+2,2)}
    v_add_f32 v2, |{v(vN)}|, |{v(vN+1)}|
    v_add_f32 v3, |{v(vN+2)}|, |{v(vN+3)}|
    v_pk_mul_f32 {v(vN,2)}, {v(vN,2)}, {v(vEx,2)}
    v_pk_add_f32 v[2:3], v[2:3], {v(vD,2)}
    v_pk_mul_f32 {v(vN+2,2)}, {v(vN+2,2)}, {v(vEx+2,2)}
    v_add_f32 v2, v2, v3
    v_cmp_ngt_f32 vcc, 0x7b800000, v2
    s_waitcnt vmcnt(0) lgkmcnt(0)
    s_cbranch_vccnz L_safe
    L_silu:
    v_pk_mul_f32 {v(vT,2)}, {v(vN,2)}, {s(sL2E,2)}
    v_pk_mul_f32 {v(vT+2,2)}, {v(vN+2,2)}, {s(sL2E,2)}
    v_exp_f32 {v(vEx)}, {v(vT)}
    v_exp_f32 {v(vEx+1)}, {v(vT+1)}
    v_exp_f32 {v(vEx+2)}, {v(vT+2)}
    v_exp_f32 {v(vEx+3)}, {v(vT+3)}
    v_pk_add_f32 {v(vEx,2)}, {v(vEx,2)}, 1.0 op_sel_hi:[1,0]
    v_pk_add_f32 {v(vEx+2,2)}, {v(vEx+2,2)}, 1.0 op_sel_hi:[1,0]
    v_rcp_f32 {v(vEx)}, {v(vEx)}
    v_rcp_f32 {v(vEx+1)}, {v(vEx+1)}
    v_rcp_f32 {v(vEx+2)}, {v(vEx+2)}
    v_rcp_f32 {v(vEx+3)}, {v(vEx+3)}
    v_pk_mul_f32 {v(vN,2)}, {v(vN,2)}, {v(vEx,2)}
    v_pk_mul_f32 {v(vN+2,2)}, {v(vN+2,2)}, {v(vEx+2,2)}
    v_cvt_pk_bf16_f32 {v(vN1)}, {v(vN)}, {v(vN+1)}
    v_cvt_pk_bf16_f32 {v(vN1+1)}, {v(vN+2)}, {v(vN+3)}
    s_sub_u32 {s(sT0)}, {s(sBA)}, 12
    buffer_store_dwordx2 {v(vN1,2)}, {v(vO)}, {s(sOUT,4)}, {s(sT0+7)} offen
    s_add_u32 {s(sBA)}, {s(sBA)}, 4
    s_cmp_lt_u32 {s(sT0)}, 4
    s_cbranch_scc1 L_main_batch
    """)
    if DIAG:
        stamp()
        A("s_waitcnt vmcnt(0)")
        stamp()
        dump_stamps(1)
    A("L_main_end:")
    A("s_endpgm")
    def safe_step():
        d = vDAT
        A(f"buffer_load_dwordx4 {v(d,4)}, {v(vP0,2)}, {s(sTAB,4)}, 0 idxen offen")
        T(0)
        A(f"""
        s_waitcnt vmcnt(0)
        v_lshlrev_b32 {v(vN1)}, 16, {v(d)}
        v_and_b32 {v(vN1+1)}, 0xffff0000, {v(d)}
        v_lshlrev_b32 {v(vN1+2)}, 16, {v(d+1)}
        v_and_b32 {v(vN1+3)}, 0xffff0000, {v(d+1)}
        v_pk_add_f32 {v(vT,2)}, {v(vT,2)}, {v(vN1,2)}
        v_pk_add_f32 {v(vT+2,2)}, {v(vT+2,2)}, {v(vN1+2,2)}
        v_lshlrev_b32 {v(vN1)}, 16, {v(d+2)}
        v_and_b32 {v(vN1+1)}, 0xffff0000, {v(d+2)}
        v_lshlrev_b32 {v(vN1+2)}, 16, {v(d+3)}
        v_and_b32 {v(vN1+3)}, 0xffff0000, {v(d+3)}
        """)
        for k in range(4): A(f"v_exp_f32 {v(vEx+k)}, {v(vT+k)}")
        A(f"v_pk_add_f32 {v(vEx,2)}, {v(vEx,2)}, 1.0 op_sel_hi:[1,0]")
        A(f"v_pk_add_f32 {v(vEx+2,2)}, {v(vEx+2,2)}, 1.0 op_sel_hi:[1,0]")
        for k in range(4): A(f"v_rcp_f32 {v(vEx+k)}, {v(vEx+k)}")
        A(f"v_pk_fma_f32 {v(vN,2)}, {v(vN1,2)}, {v(vEx,2)}, {v(vN,2)}")
        A(f"v_pk_fma_f32 {v(vN+2,2)}, {v(vN1+2,2)}, {v(vEx+2,2)}, {v(vN+2,2)}")
    A(f"""
    L_safe:
    v_mul_u32_u24 {v(vL)}, {LSTR}, v31
    v_mul_u32_u24 v2, {XAS}, v31
    v_add_u32 v2, v2, {v(vP0+1)}
    ds_read_b128 {v(vN,4)}, v2 offset:{XAU+128}
    s_max_u32 {s(sT0)}, {s(sTR)}, 1
    L_safe_loop:
    ds_read_b32 v2, {v(vL)} offset:{LIST}
    v_add_u32 {v(vL)}, 4, {v(vL)}
    s_waitcnt lgkmcnt(0)
    v_and_b32 {v(vP0)}, 0xffff, v2
    v_and_b32 {v(vEe)}, 0xffff0000, v2
    """)
    safe_step()
    A(f"""
    s_sub_u32 {s(sT0)}, {s(sT0)}, 1
    s_cmp_lg_u32 {s(sT0)}, 0
    s_cbranch_scc1 L_safe_loop
    s_branch L_silu
    """)
    A(f"""
    L_scan:
    s_waitcnt lgkmcnt(0)
    v_lshlrev_b32 v60, 6, v31
    v_add_u32 v60, {s(sB)}, v60
    v_lshlrev_b32 v56, 2, v1
    v_lshlrev_b32 v57, 1, v1
    s_mov_b32 {s(sT0)}, 0
    L_scan_outer:
    s_lshl_b32 {s(sT0+1)}, {s(sT0)}, 1
    buffer_load_dword v58, v56, {s(sDST,4)}, {s(sT0+1)} offen
    buffer_load_dword v59, v56, {s(sSRC,4)}, {s(sT0+1)} offen
    buffer_load_ushort v61, v57, {s(sE,4)}, {s(sT0)} offen
    s_waitcnt vmcnt(0)
    v_and_b32 v2, 63, v58
    v_cmp_eq_u32 {s(sM,2)}, {s(sB)}, v2
    v_lshlrev_b32 v61, 16, v61
    L_scan_inner:
    s_cmp_eq_u64 {s(sM,2)}, 0
    s_cbranch_scc1 L_scan_next
    s_ff1_i32_b64 {s(sT0+1)}, {s(sM,2)}
    s_bitset0_b64 {s(sM,2)}, {s(sT0+1)}
    v_readlane_b32 {s(sT0+2)}, v58, {s(sT0+1)}
    v_readlane_b32 {s(sT0+3)}, v59, {s(sT0+1)}
    v_readlane_b32 {s(sT0+11)}, v61, {s(sT0+1)}
    s_nop 1
    v_cmp_eq_u32 vcc, {s(sT0+2)}, v60
    s_and_b64 exec, vcc, vcc
    s_cbranch_scc0 L_scan_skip
    v_mov_b32 {v(vP0)}, {s(sT0+3)}
    v_mov_b32 {v(vEe)}, {s(sT0+11)}
    """)
    safe_step()
    A(f"""
    L_scan_skip:
    s_mov_b64 exec, -1
    s_branch L_scan_inner
    L_scan_next:
    s_add_u32 {s(sT0)}, {s(sT0)}, 128
    s_cmp_lt_u32 {s(sT0)}, {E*2}
    s_cbranch_scc1 L_scan_outer
    s_branch L_silu
    """)
    return LDS

body = A
A('.amdgcn_target "amdgcn-amd-amdhsa--gfx950"')
A(".text")
A(".globl prep_kernel")
A(".type prep_kernel,@function")
lds1 = prep_kernel()
A(f".globl {NAME}_kernel")
A(f".type {NAME}_kernel,@function")
lds2 = main_kernel()
A('.section .rodata,"a"')
for k in ("prep_kernel", f"{NAME}_kernel"):
    A(".p2align 6")
    A(f".amdhsa_kernel {k}")
    A(""".amdhsa_next_free_vgpr 120
    .amdhsa_next_free_sgpr 102
    .amdhsa_accum_offset 120
    .amdhsa_group_segment_fixed_size 0
    .amdhsa_kernarg_size 80
    .amdhsa_user_sgpr_count 2
    .amdhsa_user_sgpr_kernarg_segment_ptr 1
    .amdhsa_system_sgpr_workgroup_id_x 1
    .end_amdhsa_kernel""")
head = open("cdna_kernels/" + NAME + ".s.ref").read().split("\n")
head = [l for l in head if l.startswith(";") and "@launch" not in l and "launch geometry" not in l and "grid=ceil" not in l]
head.append(f"; @launch kernel=prep_kernel grid=(256,1,1) block=(1024,1,1) lds={lds1}")
head.append(f"; @launch kernel={NAME}_kernel grid=(256,1,1) block=(1024,1,1) lds={lds2}")
open(sys.argv[1], "w").write("\n".join(head) + "\n" + A.text())
```

```python
import sys
src=open(sys.argv[1]).read()
ka,sa,kb,sb=map(int,sys.argv[3].split(","))
useavg = 0
lines=src.split("\n")
idx=[i for i,l in enumerate(lines) if "@launch" in l]
if "kernel=" not in lines[idx[0]]:
    lines[idx[0]]=lines[idx[0]].replace("@launch","@launch kernel=gather_scatter__edge_featured_mpnn_egc__graph_kernel")
new=lines[:idx[-1]+1]+["; @launch kernel=leak_kernel grid=(1,1,1) block=(64,1,1) lds=0"]+lines[idx[-1]+1:]
s="\n".join(new)
code=f'''.globl leak_kernel
.type leak_kernel,@function
.p2align 8
leak_kernel:
    s_cmp_ge_u32 s2, 1
    s_cbranch_scc1 L_leak_end
    s_load_dwordx2 s[4:5], s[0:1], 72
    s_mov_b32 s6, 0x900000
    s_mov_b32 s7, 0x20000
    v_lshlrev_b32 v1, 6, v0
    v_mov_b32 v2, -1
    v_mov_b32 v3, 0
    s_mov_b32 s8, {0x800000+ka*0x40000+4*sa}
    s_mov_b32 s9, {0x800000+kb*0x40000+4*sb}
    s_mov_b32 s10, 0
    s_waitcnt lgkmcnt(0)
L_leak_ld:
'''
for i in range(8):
    code+=f'''    buffer_load_dword v{8+2*i}, v1, s[4:7], s8 offen
    buffer_load_dword v{9+2*i}, v1, s[4:7], s9 offen
    s_add_u32 s8, s8, 4096
    s_add_u32 s9, s9, 4096
'''
code+="    s_waitcnt vmcnt(0)\n"
for i in range(8):
    code+=f"    v_min_u32 v2, v2, v{8+2*i}\n    v_max_u32 v3, v3, v{9+2*i}\n"
code+='''    s_add_u32 s10, s10, 1
    s_cmp_lt_u32 s10, 8
    s_cbranch_scc1 L_leak_ld
    s_mov_b32 s11, -1
    s_mov_b32 s12, 0
    s_mov_b32 s10, 0
L_leak_red:
    v_readlane_b32 s13, v2, s10
    v_readlane_b32 s14, v3, s10
    s_min_u32 s11, s11, s13
    s_max_u32 s12, s12, s14
    s_add_u32 s10, s10, 1
    s_cmp_lt_u32 s10, 64
    s_cbranch_scc1 L_leak_red
    s_sub_u32 s12, s12, s11
    s_min_u32 s12, s12, 5000
    s_mul_i32 s12, s12, MULT
    s_memrealtime s[16:17]
    s_waitcnt lgkmcnt(0)
L_leak_spin:
    s_memrealtime s[18:19]
    s_waitcnt lgkmcnt(0)
    s_sub_u32 s13, s18, s16
    s_cmp_lt_u32 s13, s12
    s_cbranch_scc1 L_leak_spin
L_leak_end:
    s_endpgm
.section .rodata,"a"
.p2align 6
.amdhsa_kernel leak_kernel
.amdhsa_next_free_vgpr 32
.amdhsa_next_free_sgpr 32
.amdhsa_accum_offset 32
.amdhsa_group_segment_fixed_size 0
.amdhsa_kernarg_size 80
.amdhsa_user_sgpr_count 2
.amdhsa_user_sgpr_kernarg_segment_ptr 1
.amdhsa_system_sgpr_workgroup_id_x 1
.end_amdhsa_kernel'''.replace("MULT", sys.argv[4] if len(sys.argv)>4 else "10")
s=s.replace('.section .rodata,"a"',code,1)
open(sys.argv[2],"w").write(s)
```

```python
import sys
from asmlib import Asm, v, s

NAME = "gather_scatter__edge_featured_mpnn_egc__graph"
N, E = 10000, 160000
SLICE = 10240 * 128
SLOT0 = 4 * SLICE
SCAP = 72
SLOTB = 384
BLKB = 64 * SLOTB
WS_USED = SLOT0 + 64 * BLKB
STAMP0 = 0x800000
NCAP = 48
LSTR = 196
NLOG2E = 0xBFB8AA3B
P = 8

opts = dict(a.split("=") for a in sys.argv[2:])
DIAG = int(opts.get("diag", 0))
PREF_X = int(opts.get("prefx", 1))
PREF_T = int(opts.get("preft", 1))
PRIO = int(opts.get("prio", 1))
FUSE = int(opts.get("fuse", 0))
OUTSC = opts.get("outsc", "")

A = Asm()

sX, sE, sSRC, sDST, sU, sV, sG, sOUT, sWS, sTAB = 4, 8, 12, 16, 20, 24, 28, 32, 36, 40
sW, sXC, sJ, sF, sP, sB = 44, 45, 46, 47, 48, 49
sL2E = 50
sT0 = 52
sM = 64
sST = 80

def srd(reg, karg, nbytes):
    A(f"s_load_dwordx2 {s(reg,2)}, s[0:1], {karg}")
    A(f"s_mov_b32 {s(reg+2)}, {nbytes}")
    A(f"s_mov_b32 {s(reg+3)}, 0x20000")

nst = [0]
def stamp():
    if DIAG:
        k = nst[0]; nst[0] += 1
        A(f"s_memrealtime {s(sST+2*k,2)}")
        A("s_waitcnt lgkmcnt(0)")

def dump_stamps(kidx):
    if DIAG:
        A("s_mov_b64 exec, 1")
        A(f"s_lshl_b32 {s(sT0)}, s2, 4")
        A(f"s_add_u32 {s(sT0)}, {s(sT0)}, {s(sW)}")
        A(f"s_lshl_b32 {s(sT0)}, {s(sT0)}, 6")
        A(f"s_add_u32 {s(sT0)}, {s(sT0)}, {STAMP0 + kidx*0x40000}")
        A("v_mov_b32 v1, 0")
        for k in range(10):
            A(f"v_mov_b32 v2, {s(sST+2*k)}")
            A(f"buffer_store_dword v2, v1, {s(sWS,4)}, {s(sT0)} offen offset:{4*k}")
        A("s_mov_b64 exec, -1")
        A("v_and_b32 v1, 63, v0")
        nst[0] = 0

def zero_stamps():
    if DIAG:
        for k in range(10):
            A(f"s_mov_b64 {s(sST+2*k,2)}, 0")

def ids():
    A(f"""
    v_lshrrev_b32 v1, 6, v0
    s_and_b32 {s(sXC)}, s2, 7
    v_readfirstlane_b32 {s(sW)}, v1
    s_lshr_b32 {s(sJ)}, s2, 3
    s_and_b32 {s(sF)}, s2, 3
    s_bfe_u32 {s(sP)}, s2, 0x10002
    s_lshl_b32 {s(sB)}, {s(sP)}, 5
    s_add_u32 {s(sB)}, {s(sB)}, {s(sJ)}
    s_mov_b32 {s(sL2E)}, {NLOG2E}
    s_mov_b32 {s(sL2E+1)}, {NLOG2E}
    v_and_b32 v1, 63, v0
    """)

WF, XF, AC = 8, 40, 88
def gemm_core(vWa, vXa, w_sstride, w_hstride, w_mstride, skip3):
    def rdW(st):
        for m in range(2):
            for hh in range(2):
                A(f"ds_read_b64_tr_b16 {v(WF+16*m+4*st+2*hh,2)}, {v(vWa)} offset:{m*w_mstride+st*w_sstride+hh*w_hstride}")
    def rdX(t, st):
        A(f"ds_read_b128 {v(XF+16*t+4*st,4)}, {v(vXa+st)} offset:{t*4096}")
    def mm(t, st):
        for m in range(2):
            acc = v(AC+8*t+4*m, 4)
            A(f"v_mfma_f32_16x16x32_bf16 {acc}, {v(WF+16*m+4*st,4)}, {v(XF+16*t+4*st,4)}, {acc if st else 0}")
    for st in range(3):
        rdW(st); rdX(0, st)
    A("s_waitcnt lgkmcnt(10)"); mm(0, 0)
    rdW(3); rdX(0, 3)
    A("s_waitcnt lgkmcnt(10)"); mm(0, 1)
    for st in range(4): rdX(1, st)
    A("s_waitcnt lgkmcnt(9)"); mm(0, 2)
    for st in range(4): rdX(2, st)
    A("s_waitcnt lgkmcnt(8)"); mm(0, 3)
    A("s_waitcnt lgkmcnt(4)")
    for st in range(4): mm(1, st)
    A("s_waitcnt lgkmcnt(0)")
    A(f"s_cmp_ge_u32 {s(sW)}, 4")
    A(f"s_cbranch_scc1 {skip3}")
    for st in range(4): mm(2, st)
    A(f"{skip3}:")

def x_frag_addr(vXa, base_sgpr):
    A(f"""
    v_and_b32 v2, 15, v1
    v_lshrrev_b32 v3, 4, v1
    v_xor_b32 {v(vXa)}, v2, v3
    v_lshlrev_b32 {v(vXa)}, 4, {v(vXa)}
    v_lshl_or_b32 {v(vXa)}, v2, 8, {v(vXa)}
    """)
    for st in range(1, 4):
        A(f"v_xor_b32 {v(vXa+st)}, {st*64}, {v(vXa)}")
    for st in range(4):
        A(f"v_add_u32 {v(vXa+st)}, {s(base_sgpr)}, {v(vXa+st)}")

def prep_kernel():
    CNT, IMG, XL, WB = 0, 256, 8192, 32768
    WV = WB + 16384
    LDS = WV + 16384
    sC, sQB, sH, sB0 = sT0+4, sT0+5, sT0+6, sT0+7
    A(".p2align 8")
    A(f"{NAME}_kernel:" if FUSE else "prep_kernel:")
    A("s_cmp_ge_u32 s2, 256")
    A("s_cbranch_scc1 L_main_end" if FUSE else "s_cbranch_scc1 L_prep_end")
    zero_stamps()
    stamp()
    srd(sDST, 24, E*4); srd(sSRC, 16, E*4); srd(sE, 8, E*2)
    srd(sG, 48, 257*256); srd(sV, 40, 128*256); srd(sX, 0, N*256)
    srd(sWS, 72, STAMP0 + 0x100000 if DIAG else WS_USED); srd(sU, 32, 128*256)
    ids()
    A(f"""
    s_lshr_b32 {s(sC)}, {s(sJ)}, 2
    s_lshl3_add_u32 {s(sC)}, {s(sXC)}, {s(sC)}
    s_and_b32 {s(sQB)}, {s(sJ)}, 3
    s_and_b32 {s(sH)}, {s(sJ)}, 1
    s_and_b32 {s(sB0)}, {s(sB)}, 62
    s_mul_i32 {s(sT0)}, {s(sC)}, 10000
    s_mul_i32 {s(sT0+1)}, {s(sC)}, 5000
    v_lshlrev_b32 v2, 4, v0
    v_lshlrev_b32 v3, 3, v0
    """)
    A(f"""
    v_lshrrev_b32 v5, 3, v1
    v_and_b32 v6, 2, v5
    s_and_b32 {s(sT0+2)}, {s(sW)}, 1
    s_lshl_b32 {s(sT0+2)}, {s(sT0+2)}, 2
    v_or_b32 v6, {s(sT0+2)}, v6
    v_and_b32 v4, 7, v1
    v_xor_b32 v4, v4, v6
    v_lshlrev_b32 v4, 4, v4
    v_lshl_or_b32 v4, v5, 8, v4
    s_lshl_b32 {s(sT0+2)}, {s(sW)}, 11
    s_lshl_b32 {s(sT0+3)}, {s(sH)}, 7
    s_add_u32 {s(sT0+2)}, {s(sT0+2)}, {s(sT0+3)}
    s_add_u32 {s(sT0+3)}, {s(sT0+2)}, 32768
    """)
    A(f"""
    v_lshrrev_b32 v6, 4, v0
    v_xor_b32 v5, v6, v1
    v_and_b32 v5, 15, v5
    v_lshlrev_b32 v5, 4, v5
    v_and_b32 v7, 1, v6
    v_lshl_or_b32 v5, v7, 8, v5
    v_lshrrev_b32 v7, 1, v6
    v_lshl_or_b32 v5, v7, 14, v5
    s_mul_i32 {s(sT0+8)}, {s(sF)}, {40*64*256}
    s_lshl_b32 {s(sT0+9)}, {s(sB0)}, 8
    s_add_u32 {s(sT0+8)}, {s(sT0+8)}, {s(sT0+9)}
    s_movk_i32 {s(sT0+9)}, 625
    v_cmp_gt_u32 {s(sM+8,2)}, {s(sT0+9)}, v0
    s_lshl_b32 {s(sT0+10)}, {s(sW)}, 10
    s_waitcnt lgkmcnt(0)
    s_cmp_ge_u32 {s(sW)}, 10
    s_cbranch_scc1 L_prep_noedge
    s_mov_b64 exec, {s(sM+8,2)}
    buffer_load_dwordx4 v[8:11], v2, {s(sDST,4)}, {s(sT0)} offen
    buffer_load_dwordx4 v[12:15], v2, {s(sSRC,4)}, {s(sT0)} offen
    buffer_load_dwordx2 v[16:17], v3, {s(sE,4)}, {s(sT0+1)} offen
    s_mov_b64 exec, -1
    L_prep_noedge:
    s_add_u32 m0, {s(sT0+10)}, {WB}
    s_nop 0
    buffer_load_dwordx4 v4, {s(sG,4)}, {s(sT0+3)} offen lds
    s_add_u32 m0, {s(sT0+10)}, {WV}
    s_nop 0
    buffer_load_dwordx4 v4, {s(sV,4)}, {s(sT0+2)} offen lds
    s_add_u32 m0, {s(sT0+10)}, {XL}
    s_nop 0
    buffer_load_dwordx4 v5, {s(sX,4)}, {s(sT0+8)} offen lds
    s_cmp_lt_u32 {s(sW)}, 10
    s_cbranch_scc1 L_prep_b0
    """)
    A(f"""
    s_cmp_lt_u32 {s(sW)}, 12
    s_cbranch_scc1 L_prep_init
    s_add_u32 m0, {s(sT0+10)}, {XL+4096}
    s_add_u32 {s(sT0+9)}, {s(sT0+8)}, {8*64*256}
    buffer_load_dwordx4 v5, {s(sX,4)}, {s(sT0+9)} offen lds
    L_prep_init:
    v_mov_b32 v8, -1
    v_mov_b32 v9, -1
    v_mov_b32 v10, -1
    v_mov_b32 v11, -1
    v_subrev_u32 v2, {640*16}, v2
    v_mov_b32 v12, 0
    v_lshlrev_b32 v13, 2, v1
    ds_write_b128 v2, v[8:11] offset:{IMG}
    ds_write_b32 v13, v12 offset:{CNT}
    s_waitcnt lgkmcnt(0)
    L_prep_b0:
    s_barrier
    """)
    stamp()
    A(f"""
    s_cmp_ge_u32 {s(sW)}, 10
    s_cbranch_scc1 L_prep_b1
    s_mov_b64 exec, {s(sM+8,2)}
    v_mov_b32 v18, 1
    s_movk_i32 {s(sT0)}, {SLOTB}
    s_mov_b32 {s(sT0+1)}, 0xffff0000
    s_waitcnt vmcnt(5)
    """)
    for i in range(4):
        A(f"""
        v_bfe_u32 v19, {v(8+i)}, 4, 2
        v_and_b32 {v(20+i)}, 15, {v(8+i)}
        v_cmp_eq_u32 {s(sM+2*i,2)}, {s(sQB)}, v19
        v_lshlrev_b32 {v(24+i)}, 2, {v(20+i)}
        """)
    for i in range(4):
        A(f"s_mov_b64 exec, {s(sM+2*i,2)}")
        A(f"ds_add_rtn_u32 {v(24+i)}, {v(24+i)}, v18 offset:{CNT}")
    A(f"s_mov_b64 exec, {s(sM+8,2)}")
    for i in range(4):
        A(f"v_lshrrev_b32 {v(8+i)}, 6, {v(8+i)}")
        A(f"v_mul_u32_u24 {v(20+i)}, {s(sT0)}, {v(20+i)}")
    A("s_waitcnt vmcnt(3)")
    A(f"""
    v_lshl_or_b32 v12, v16, 16, v12
    v_and_or_b32 v13, v16, {s(sT0+1)}, v13
    v_lshl_or_b32 v14, v17, 16, v14
    v_and_or_b32 v15, v17, {s(sT0+1)}, v15
    s_movk_i32 {s(sT0)}, -380
    s_movk_i32 {s(sT0+1)}, {SCAP}
    """)
    A("s_waitcnt lgkmcnt(0)")
    for i in range(4):
        A(f"""
        v_mul_u32_u24 v19, 171, {v(24+i)}
        v_lshl_add_u32 {v(20+i)}, {v(24+i)}, 4, {v(20+i)}
        v_lshrrev_b32 v19, 12, v19
        v_cmp_gt_u32 vcc, {s(sT0+1)}, {v(24+i)}
        v_mad_i32_i24 {v(20+i)}, v19, {s(sT0)}, {v(20+i)}
        v_mad_i32_i24 {v(24+i)}, v19, -3, {v(20+i)}
        s_and_b64 exec, vcc, {s(sM+2*i,2)}
        ds_write_b32 {v(20+i)}, {v(12+i)} offset:{IMG}
        ds_write_b8 {v(24+i)}, {v(8+i)} offset:{IMG+12}
        s_mov_b64 exec, {s(sM+8,2)}
        """)
    A(f"""
    s_mov_b64 exec, -1
    s_waitcnt lgkmcnt(0)
    L_prep_b1:
    s_barrier
    """)
    stamp()
    A(f"""
    s_cmp_lt_u32 {s(sW)}, 10
    s_cbranch_scc1 L_prep_nost
    v_subrev_u32 v3, 640, v0
    v_mul_u32_u24 v3, 171, v3
    v_lshrrev_b32 v3, 12, v3
    v_lshlrev_b32 v12, 2, v3
    ds_read_b128 v[8:11], v2 offset:{IMG}
    ds_read_b32 v12, v12 offset:{CNT}
    s_mul_i32 {s(sT0)}, {s(sQB)}, {16*BLKB}
    s_mul_i32 {s(sT0+1)}, {s(sC)}, {SLOTB}
    s_add_u32 {s(sT0)}, {s(sT0)}, {s(sT0+1)}
    s_add_u32 {s(sT0)}, {s(sT0)}, {SLOT0}
    s_movk_i32 {s(sT0+1)}, {BLKB-SLOTB}
    v_mad_u32_u24 v2, v3, {s(sT0+1)}, v2
    v_mov_b32 v13, 0xfffefefe
    s_waitcnt lgkmcnt(0)
    v_cmp_lt_u32 vcc, {SCAP}, v12
    s_nop 1
    v_cndmask_b32 v11, v11, v13, vcc
    s_nop 0
    buffer_store_dwordx4 v[8:11], v2, {s(sWS,4)}, {s(sT0)} offen sc1
    s_waitcnt vmcnt(1)
    s_barrier
    """)
    stamp(); nst[0] -= DIAG
    A(f"""
    s_branch L_prep_pref
    L_prep_nost:
    """)
    A(f"""
    s_lshr_b32 {s(sT0)}, {s(sW)}, 2
    s_mul_i32 {s(sT0+1)}, {s(sT0)}, {3*4096}
    s_add_u32 {s(sT0+1)}, {s(sT0+1)}, {XL}
    """)
    x_frag_addr(4, sT0+1)
    A(f"""
    v_bfe_u32 v113, v1, 3, 2
    s_and_b32 {s(sT0+2)}, {s(sW)}, 3
    v_xor_b32 v113, {s(sT0+2)}, v113
    v_and_b32 v112, 3, v1
    v_lshlrev_b32 v112, 3, v112
    v_lshl_or_b32 v112, v113, 5, v112
    v_bfe_u32 v113, v1, 2, 2
    v_lshl_or_b32 v112, v113, 7, v112
    v_lshl_or_b32 v112, v3, 10, v112
    v_add_u32 v112, {WB}, v112
    """)
    A(f"""
    v_lshrrev_b32 v113, 1, v2
    v_lshlrev_b32 v113, 13, v113
    v_and_b32 v2, 1, v2
    v_lshl_or_b32 v113, v2, 7, v113
    v_lshl_or_b32 v113, v3, 4, v113
    s_lshr_b32 {s(sT0+3)}, {s(sT0+2)}, 1
    s_lshl1_add_u32 {s(sT0+3)}, {s(sH)}, {s(sT0+3)}
    s_mul_i32 {s(sT0+3)}, {s(sT0+3)}, {SLICE}
    s_lshr_b32 {s(sT0+9)}, {s(sT0+8)}, 1
    s_add_u32 {s(sT0+3)}, {s(sT0+3)}, {s(sT0+9)}
    s_mul_i32 {s(sT0+9)}, {s(sT0)}, {3*65536}
    s_add_u32 {s(sT0+3)}, {s(sT0+3)}, {s(sT0+9)}
    s_and_b32 {s(sT0+9)}, {s(sW)}, 1
    s_lshl_b32 {s(sT0+9)}, {s(sT0+9)}, 6
    s_add_u32 {s(sT0+3)}, {s(sT0+3)}, {s(sT0+9)}
    s_waitcnt vmcnt(0)
    s_barrier
    """)
    stamp()
    A(f"""
    s_cmp_ge_u32 {s(sW)}, 8
    s_cbranch_scc1 L_prep_pref
    """)
    gemm_core(112, 4, 4096, 512, 16384, "L_prep_skip3")
    def epi(t):
        a = AC + 8*t
        d = XF + 16*t
        A(f"""
        v_pk_mul_f32 {v(a,2)}, {v(a,2)}, {s(sL2E,2)}
        v_pk_mul_f32 {v(a+2,2)}, {v(a+2,2)}, {s(sL2E,2)}
        v_cvt_pk_bf16_f32 {v(d+2)}, {v(a+4)}, {v(a+5)}
        v_cvt_pk_bf16_f32 {v(d+3)}, {v(a+6)}, {v(a+7)}
        v_cvt_pk_bf16_f32 {v(d)}, {v(a)}, {v(a+1)}
        v_cvt_pk_bf16_f32 {v(d+1)}, {v(a+2)}, {v(a+3)}
        s_nop 0
        buffer_store_dwordx4 {v(d,4)}, v113, {s(sWS,4)}, {s(sT0+3)} offen sc1
        s_add_u32 {s(sT0+3)}, {s(sT0+3)}, 65536
        """)
    epi(0); epi(1)
    A(f"s_cmp_ge_u32 {s(sW)}, 4")
    A("s_cbranch_scc1 L_prep_fin")
    epi(2)
    A("s_branch L_prep_fin")
    A("L_prep_pref:")
    if PREF_X:
        A(f"""
        s_cmp_ge_u32 {s(sW)}, 13
        s_cbranch_scc1 L_prep_pref2
        v_subrev_u32 v2, 512, v0
        v_lshrrev_b32 v3, 1, v2
        v_and_b32 v2, 1, v2
        v_lshlrev_b32 v2, 7, v2
        v_lshl_or_b32 v2, v3, 14, v2
        s_lshl_b32 {s(sT0)}, {s(sB)}, 8
        buffer_load_dword v3, v2, {s(sX,4)}, {s(sT0)} offen
        s_branch L_prep_fin
        L_prep_pref2:
        s_cmp_gt_u32 {s(sW)}, 13
        s_cbranch_scc1 L_prep_fin
        s_mov_b64 exec, 15
        v_lshlrev_b32 v2, 8, v1
        s_lshl_b32 {s(sT0)}, {s(sJ)}, 10
        s_lshl_b32 {s(sT0+1)}, {s(sF)}, 6
        s_add_u32 {s(sT0)}, {s(sT0)}, {s(sT0+1)}
        buffer_load_dword v3, v2, {s(sG,4)}, {s(sT0)} offen
        buffer_load_dword v4, v2, {s(sU,4)}, {s(sT0)} offen
        """)
    A("L_prep_fin:")
    if DIAG:
        stamp()
        A("s_waitcnt vmcnt(0)")
        stamp()
        dump_stamps(0)
    if FUSE:
        A(f"""
        s_mov_b64 exec, -1
        s_load_dwordx2 s[76:77], s[0:1], 64
        s_mov_b32 s78, 256
        s_mov_b32 s79, 0x20000
        s_waitcnt vmcnt(0) lgkmcnt(0)
        s_barrier
        s_cmp_lg_u32 {s(sW)}, 0
        s_cbranch_scc1 L_fuse_wait
        s_and_b32 {s(sT0)}, s2, 3
        s_lshl_b32 {s(sT0)}, {s(sT0)}, 6
        v_mov_b32 v2, 0
        v_mov_b32 v3, 1
        s_mov_b64 exec, 1
        buffer_atomic_add v3, v2, s[76:79], {s(sT0)} offen sc1
        s_mov_b64 exec, 15
        v_lshlrev_b32 v2, 6, v1
        s_mov_b32 {s(sT0)}, 0
        L_fuse_spin:
        buffer_load_dword v3, v2, s[76:79], 0 offen sc1
        s_add_u32 {s(sT0)}, {s(sT0)}, 1
        s_cmp_gt_u32 {s(sT0)}, 20000
        s_cbranch_scc1 L_fuse_out
        s_waitcnt vmcnt(0)
        v_cmp_ne_u32 vcc, 64, v3
        s_cbranch_vccnz L_fuse_spin
        L_fuse_out:
        s_mov_b64 exec, -1
        L_fuse_wait:
        s_barrier
        """)
        return LDS
    A("L_prep_end:")
    A("s_endpgm")
    return LDS

def main_kernel():
    CNT, HIST, ORDER, FLAG, LIST = 0, 768, 1024, 1792, 2048
    XAU = LIST + 32768
    XAS = 272
    XL = XAU + 160*XAS
    WA = XL + 160*256
    WU = WA + 8192
    LDS = WU + 8192 + 4096
    vC, vXA, vN, vD, vI, vP0, vEe, vL, vO = 4, 8, 12, 16, 20, 22, 26, 28, 29
    vT, vMm, vEx, vN1, vDAT = 32, 40, 48, 52, 64
    vCraw = 116
    sBA, sTR, sFL = sT0+8, sT0+9, sT0+10
    if not FUSE:
        A(".p2align 8")
        A(f"{NAME}_kernel:")
        A("s_cmp_ge_u32 s2, 256")
        A("s_cbranch_scc1 L_main_end")
    zero_stamps()
    stamp()
    srd(sWS, 72, STAMP0 + 0x100000 if DIAG else WS_USED); srd(sX, 0, N*256)
    srd(sG, 48, 257*256); srd(sU, 32, 128*256); srd(sOUT, 56, N*256)
    srd(sDST, 24, E*4); srd(sSRC, 16, E*4); srd(sE, 8, E*2)
    ids()
    A(f"""
    s_mov_b32 {s(sTAB+2)}, {N}
    s_mov_b32 {s(sTAB+3)}, 0x20000
    s_mul_i32 {s(sT0+4)}, {s(sF)}, {SLICE}
    v_and_b32 v2, 7, v1
    v_lshlrev_b32 v2, 3, v2
    s_lshl_b32 {s(sT0+5)}, {s(sF)}, 6
    s_add_u32 {s(sT0+6)}, {s(sT0+5)}, 65536
    s_cmp_ge_u32 {s(sW)}, 8
    s_cbranch_scc1 L_main_hi
    """)
    A(f"""
    v_lshrrev_b32 v6, 4, v0
    v_xor_b32 v5, v6, v1
    v_and_b32 v5, 15, v5
    v_lshlrev_b32 v5, 4, v5
    v_lshl_or_b32 v5, v6, 14, v5
    v_lshrrev_b32 v6, 2, v0
    v_bfe_u32 v7, v1, 5, 1
    v_lshlrev_b32 v7, 1, v7
    v_and_b32 v4, 3, v1
    v_xor_b32 v4, v4, v7
    v_lshlrev_b32 v4, 4, v4
    v_lshl_or_b32 v4, v6, 8, v4
    s_lshl_b32 {s(sT0)}, {s(sW)}, 10
    s_lshl_b32 {s(sT0+1)}, {s(sB)}, 8
    s_add_u32 m0, {s(sT0)}, {WA}
    s_waitcnt lgkmcnt(0)
    buffer_load_dwordx2 {v(vCraw,2)}, v2, {s(sG,4)}, {s(sT0+6)} offen
    buffer_load_dwordx4 v4, {s(sG,4)}, {s(sT0+5)} offen lds
    s_add_u32 m0, {s(sT0)}, {WU}
    s_nop 0
    buffer_load_dwordx4 v4, {s(sU,4)}, {s(sT0+5)} offen lds
    """)
    for i in range(5):
        A(f"s_add_u32 m0, {s(sT0)}, {XL + i*8192}")
        A(f"s_add_u32 {s(sT0+2)}, {s(sT0+1)}, {i*32*64*256}")
        A(f"buffer_load_dwordx4 v5, {s(sX,4)}, {s(sT0+2)} offen lds")
    A("s_branch L_main_init")
    A(f"""
    L_main_hi:
    v_lshlrev_b32 v3, 4, v1
    s_mul_i32 {s(sT0)}, {s(sB)}, {BLKB}
    s_mul_i32 {s(sT0+1)}, {s(sW)}, 3072
    s_add_u32 {s(sT0)}, {s(sT0)}, {s(sT0+1)}
    s_add_u32 {s(sT0)}, {s(sT0)}, {SLOT0 - 8*3072}
    v_lshlrev_b32 v5, 7, v1
    s_lshl3_add_u32 {s(sT0+1)}, {s(sJ)}, {s(sW)}
    s_sub_u32 {s(sT0+1)}, {s(sT0+1)}, 8
    s_mul_i32 {s(sT0+1)}, {s(sT0+1)}, {40*128}
    s_add_u32 {s(sT0+1)}, {s(sT0+1)}, {s(sT0+4)}
    s_waitcnt lgkmcnt(0)
    buffer_load_dwordx2 {v(vCraw,2)}, v2, {s(sG,4)}, {s(sT0+6)} offen
    """)
    for i in range(3):
        A(f"buffer_load_dwordx4 {v(8+4*i,4)}, v3, {s(sWS,4)}, {s(sT0)} offen offset:{1024*i}")
    A(f"""
    L_main_init:
    s_add_u32 {s(sTAB)}, {s(sWS)}, {s(sT0+4)}
    s_addc_u32 {s(sTAB+1)}, {s(sWS+1)}, 0
    s_or_b32 {s(sTAB+1)}, {s(sTAB+1)}, 0x800000
    v_mov_b32 v20, 0xffff
    v_mov_b32 v21, v20
    v_mov_b32 v22, v20
    v_mov_b32 v23, v20
    v_lshlrev_b32 v6, 4, v0
    ds_write_b128 v6, v[20:23] offset:{LIST}
    ds_write_b128 v6, v[20:23] offset:{LIST+16384}
    s_cmp_ge_u32 {s(sW)}, 8
    s_cbranch_scc1 L_main_hi2
    v_mov_b32 v20, 0
    v_lshlrev_b32 v6, 2, v0
    ds_write_b32 v6, v20
    """)
    A(f"""
    s_lshr_b32 {s(sT0)}, {s(sW)}, 1
    s_mul_i32 {s(sT0)}, {s(sT0)}, 3
    s_and_b32 {s(sT0+1)}, {s(sW)}, 6
    s_add_u32 {s(sT0+1)}, {s(sT0+1)}, 2
    s_cmp_lt_u32 {s(sW)}, 4
    s_cselect_b32 {s(sT0)}, {s(sT0)}, {s(sT0+1)}
    s_lshl_b32 {s(sT0+1)}, {s(sT0)}, 12
    s_add_u32 {s(sT0+1)}, {s(sT0+1)}, {XL}
    """)
    x_frag_addr(4, sT0+1)
    A(f"""
    s_and_b32 {s(sT0+2)}, {s(sW)}, 1
    v_and_b32 v113, 1, v3
    v_xor_b32 v113, {s(sT0+2)}, v113
    v_and_b32 v112, 3, v1
    v_lshlrev_b32 v112, 3, v112
    v_lshl_or_b32 v112, v113, 5, v112
    v_bfe_u32 v113, v1, 2, 2
    v_lshl_or_b32 v112, v113, 6, v112
    v_lshl_or_b32 v112, v3, 9, v112
    v_add_u32 v112, {WA}, v112
    s_mul_i32 {s(sT0+1)}, {s(sT0)}, {16*XAS}
    s_lshl_b32 {s(sT0+2)}, {s(sT0+2)}, 6
    s_add_u32 {s(sT0+1)}, {s(sT0+1)}, {s(sT0+2)}
    s_add_u32 {s(sT0+1)}, {s(sT0+1)}, {XAU}
    v_mul_u32_u24 v113, {XAS}, v2
    v_lshl_add_u32 v113, v3, 4, v113
    v_add_u32 v113, {s(sT0+1)}, v113
    s_waitcnt vmcnt(0) lgkmcnt(0)
    s_barrier
    """)
    stamp()
    gemm_core(112, 4, 2048, 256, 8192, "L_main_skip3")
    def epi(t):
        a = AC + 8*t
        A(f"""
        v_pk_mul_f32 {v(a,2)}, {v(a,2)}, {s(sL2E,2)}
        v_pk_mul_f32 {v(a+2,2)}, {v(a+2,2)}, {s(sL2E,2)}
        ds_write_b128 v113, {v(a+4,4)} offset:{t*16*XAS+128}
        ds_write_b128 v113, {v(a,4)} offset:{t*16*XAS}
        """)
    epi(0)
    A("s_nop 3")
    epi(1)
    A(f"s_cmp_ge_u32 {s(sW)}, 4")
    A("s_cbranch_scc1 L_main_b2")
    epi(2)
    A("s_branch L_main_b2")
    A("L_main_hi2:")
    npf = 0
    if PREF_T:
        A(f"""
        s_mov_b32 exec_hi, 0xff
        buffer_load_dword v118, v5, {s(sWS,4)}, {s(sT0+1)} offen
        s_mov_b64 exec, -1
        """)
        npf = 1
    A(f"""
    v_mov_b32 v24, 1
    v_mov_b32 v25, 2
    v_mov_b32 v26, {LSTR}
    s_movk_i32 {s(sT0)}, 0xfe
    s_mov_b64 {s(sM+6,2)}, 0
    s_waitcnt lgkmcnt(0)
    s_barrier
    """)
    nst[0] -= DIAG
    stamp()
    for i in range(3):
        d = 8 + 4*i
        A(f"s_waitcnt vmcnt({2-i+npf})")
        for p in range(3):
            A(f"v_cmp_gt_u32_sdwa {s(sM+2*p,2)}, {s(sT0)}, {v(d+3)} src0_sel:DWORD src1_sel:BYTE_{p}")
            A(f"v_lshlrev_b32_sdwa {v(28+p)}, v25, {v(d+3)} dst_sel:DWORD dst_unused:UNUSED_PAD src0_sel:DWORD src1_sel:BYTE_{p}")
        A(f"v_cmp_eq_u32_sdwa vcc, {s(sT0)}, {v(d+3)} src0_sel:DWORD src1_sel:BYTE_0")
        for p in range(3):
            A(f"s_mov_b64 exec, {s(sM+2*p,2)}")
            A(f"ds_add_rtn_u32 {v(28+p)}, {v(28+p)}, v24 offset:{CNT}")
        A("s_mov_b64 exec, -1")
        A(f"s_or_b64 {s(sM+6,2)}, {s(sM+6,2)}, vcc")
        for p in range(3):
            A(f"v_mul_u32_u24_sdwa {v(32+p)}, v26, {v(d+3)} dst_sel:DWORD dst_unused:UNUSED_PAD src0_sel:DWORD src1_sel:BYTE_{p}")
        A("s_waitcnt lgkmcnt(0)")
        for p in range(3):
            A(f"""
            v_cmp_gt_u32 vcc, {NCAP}, {v(28+p)}
            v_lshl_add_u32 {v(32+p)}, {v(28+p)}, 2, {v(32+p)}
            s_and_b64 exec, vcc, {s(sM+2*p,2)}
            ds_write_b32 {v(32+p)}, {v(d+p)} offset:{LIST}
            s_mov_b64 exec, -1
            """)
    A(f"""
    s_mov_b64 exec, {s(sM+6,2)}
    v_mov_b32 v28, 0
    ds_write_b32 v28, v24 offset:{FLAG}
    s_mov_b64 exec, -1
    L_main_b2:
    s_waitcnt lgkmcnt(0)
    s_barrier
    """)
    stamp()
    A(f"""
    s_cmp_lg_u32 {s(sW)}, 0
    s_cbranch_scc1 L_main_nosort
    v_lshlrev_b32 v2, 2, v1
    ds_read_b32 v8, v2 offset:{CNT}
    ds_read_b32 v9, v2 offset:{CNT+256}
    ds_read_b32 v10, v2 offset:{CNT+512}
    v_mov_b32 v24, 1
    s_mov_b32 {s(sM)}, -1
    s_mov_b32 {s(sM+1)}, 0
    s_waitcnt lgkmcnt(0)
    v_max3_u32 v3, v8, v9, v10
    """)
    for k in range(3):
        A(f"v_min_u32 {v(8+k)}, 63, {v(8+k)}")
        A(f"v_sub_u32 {v(12+k)}, 63, {v(8+k)}")
        A(f"v_lshlrev_b32 {v(12+k)}, 2, {v(12+k)}")
    A(f"""
    ds_add_rtn_u32 v16, v12, v24 offset:{HIST}
    ds_add_rtn_u32 v17, v13, v24 offset:{HIST}
    s_mov_b64 exec, {s(sM,2)}
    ds_add_rtn_u32 v18, v14, v24 offset:{HIST}
    s_mov_b64 exec, -1
    ds_read_b32 v19, v2 offset:{HIST}
    v_cmp_lt_u32 vcc, {NCAP}, v3
    v_lshl_or_b32 v8, v8, 8, v1
    v_lshl_or_b32 v9, v9, 8, v1
    v_lshl_or_b32 v10, v10, 8, v1
    v_add_u32 v9, 64, v9
    v_add_u32 v10, 128, v10
    v_mov_b32 v3, 0
    s_mov_b64 exec, vcc
    ds_write_b32 v3, v24 offset:{FLAG}
    s_mov_b64 exec, -1
    s_waitcnt lgkmcnt(0)
    v_mov_b32 v20, v19
    s_nop 1
    v_add_u32_dpp v20, v20, v20 row_shr:1 row_mask:0xf bank_mask:0xf bound_ctrl:1
    s_nop 1
    v_add_u32_dpp v20, v20, v20 row_shr:2 row_mask:0xf bank_mask:0xf bound_ctrl:1
    s_nop 1
    v_add_u32_dpp v20, v20, v20 row_shr:4 row_mask:0xf bank_mask:0xf bound_ctrl:1
    s_nop 1
    v_add_u32_dpp v20, v20, v20 row_shr:8 row_mask:0xf bank_mask:0xf bound_ctrl:1
    s_nop 1
    v_add_u32_dpp v20, v20, v20 row_bcast:15 row_mask:0xa bank_mask:0xf
    s_nop 1
    v_add_u32_dpp v20, v20, v20 row_bcast:31 row_mask:0xc bank_mask:0xf
    v_sub_u32 v20, v20, v19
    ds_bpermute_b32 v12, v12, v20
    ds_bpermute_b32 v13, v13, v20
    ds_bpermute_b32 v14, v14, v20
    s_waitcnt lgkmcnt(0)
    v_add_lshl_u32 v12, v12, v16, 2
    v_add_lshl_u32 v13, v13, v17, 2
    v_add_lshl_u32 v14, v14, v18, 2
    ds_write_b32 v12, v8 offset:{ORDER}
    ds_write_b32 v13, v9 offset:{ORDER}
    s_mov_b64 exec, {s(sM,2)}
    ds_write_b32 v14, v10 offset:{ORDER}
    s_mov_b64 exec, -1
    L_main_nosort:
    """)
    A(f"""
    v_lshlrev_b32 {v(vC)}, 16, {v(vCraw)}
    v_and_b32 {v(vC+1)}, 0xffff0000, {v(vCraw)}
    v_lshlrev_b32 {v(vC+2)}, 16, {v(vCraw+1)}
    v_and_b32 {v(vC+3)}, 0xffff0000, {v(vCraw+1)}
    v_pk_mul_f32 {v(vC,2)}, {v(vC,2)}, {s(sL2E,2)}
    v_pk_mul_f32 {v(vC+2,2)}, {v(vC+2,2)}, {s(sL2E,2)}
    v_and_b32 v2, 1, v1
    v_lshlrev_b32 v2, 4, v2
    v_mov_b32 v3, 0x3f80
    v_lshlrev_b32 v3, v2, v3
    v_and_b32 v2, 2, v1
    v_cmp_eq_u32 vcc, 0, v2
    v_and_b32 v2, 7, v1
    v_lshlrev_b32 {v(vP0+1)}, 4, v2
    v_cndmask_b32 {v(vI)}, 0, v3, vcc
    v_sub_u32 {v(vI+1)}, v3, {v(vI)}
    v_mov_b32 {v(vP0+3)}, {v(vP0+1)}
    v_mov_b32 {v(vEe)}, 0
    v_mov_b32 {v(vEe+1)}, 0
    v_lshrrev_b32 v30, 3, v1
    v_lshlrev_b32 v30, 2, v30
    s_xor_b32 {s(sT0)}, {s(sW)}, 3
    s_bitcmp1_b32 {s(sW)}, 2
    s_cselect_b32 {s(sBA)}, {s(sT0)}, {s(sW)}
    s_lshl_b32 {s(sT0+7)}, {s(sB)}, 8
    s_add_u32 {s(sT0+7)}, {s(sT0+7)}, {s(sT0+5)}
    s_waitcnt lgkmcnt(0)
    s_barrier
    """)
    stamp()
    if PRIO:
        A(f"""
        s_cmp_lt_u32 {s(sW)}, 12
        s_cbranch_scc1 L_main_batch
        s_setprio 1
        """)
    A(f"""
    L_main_batch:
    s_lshl_b32 {s(sT0)}, {s(sBA)}, 5
    v_add_u32 v2, {s(sT0)}, v30
    v_mov_b32 v3, 0
    ds_read_b32 v31, v2 offset:{ORDER}
    ds_read_b32 v3, v3 offset:{FLAG}
    """)
    for k in range(P):
        A(f"v_mov_b32 {v(vDAT+4*k+1)}, {v(vP0+1)}")
    for k in range(4):
        A(f"v_mov_b32 {v(vD+k)}, 1.0")
    A(f"""
    s_waitcnt lgkmcnt(0)
    v_readfirstlane_b32 {s(sTR)}, v31
    v_readfirstlane_b32 {s(sFL)}, v3
    v_and_b32 v31, 0xff, v31
    v_mul_u32_u24 {v(vL)}, {LSTR}, v31
    v_mul_u32_u24 v2, {XAS}, v31
    v_add_u32 v2, v2, {v(vP0+1)}
    """)
    for k in range(P):
        A(f"ds_read_u16 {v(vDAT+4*k)}, {v(vL)} offset:{LIST+4*k}")
    A(f"""
    ds_read_b128 {v(vXA,4)}, v2 offset:{XAU}
    ds_read_b128 {v(vN,4)}, v2 offset:{XAU+128}
    ds_read_u16_d16_hi {v(vEe)}, {v(vL)} offset:{LIST+2}
    ds_read_u16_d16_hi {v(vEe+1)}, {v(vL)} offset:{LIST+6}
    ds_read_u16 {v(vP0)}, {v(vL)} offset:{LIST+4*P}
    ds_read_u16 {v(vP0+2)}, {v(vL)} offset:{LIST+4*P+4}
    v_lshrrev_b32 {v(vO)}, 1, {v(vP0+1)}
    v_lshl_or_b32 {v(vO)}, v31, 14, {v(vO)}
    s_lshr_b32 {s(sTR)}, {s(sTR)}, 8
    s_cmp_lg_u32 {s(sFL)}, 0
    s_cbranch_scc1 L_scan
    """)
    for k in range(P):
        A(f"s_waitcnt lgkmcnt({P-1-k+6})")
        A(f"buffer_load_dwordx4 {v(vDAT+4*k,4)}, {v(vDAT+4*k,2)}, {s(sTAB,4)}, 0 idxen offen")
    def T(st):
        t = vT + 4*(st % 2)
        sel = "op_sel:[1,0,0] op_sel_hi:[1,1,1]" if st % 2 else "op_sel_hi:[0,1,1]"
        A(f"v_pk_fma_f32 {v(t,2)}, {v(vEe,2)}, {v(vC,2)}, {v(vXA,2)} {sel}")
        A(f"v_pk_fma_f32 {v(t+2,2)}, {v(vEe,2)}, {v(vC+2,2)}, {v(vXA+2,2)} {sel}")
    def M1(st):
        t = vT + 4*(st % 2); d = vDAT + 4*(st % P)
        A(f"v_mfma_f32_4x4x4_16b_bf16 {v(t,4)}, {v(vI,2)}, {v(d,2)}, {v(t,4)}")
    def M2(st):
        m = vMm + 4*(st % 2); d = vDAT + 4*(st % P)
        A(f"v_mfma_f32_4x4x4_16b_bf16 {v(m,4)}, {v(vI,2)}, {v(d+2,2)}, 0")
    def Ld(st):
        A(f"buffer_load_dwordx4 {v(vDAT+4*(st%P),4)}, {v(vP0+2*(st%2),2)}, {s(sTAB,4)}, 0 idxen offen")
    A(f"""
    s_max_u32 {s(sT0)}, {s(sTR)}, 1
    s_sub_u32 {s(sT0)}, {s(sT0)}, 1
    s_waitcnt lgkmcnt(0)
    """)
    T(0); T(1)
    A(f"ds_read_u16_d16_hi {v(vEe)}, {v(vL)} offset:{LIST+4*2+2}")
    A(f"s_waitcnt vmcnt({P-1})")
    M1(0); M2(0)
    A("s_nop 1")
    Ld(P)
    A("s_nop 0")
    A("L_loop:")
    for k in range(P):
        z = vT + 4*(k % 2); m = vMm + 4*(k % 2)
        A(f"s_waitcnt vmcnt({P-1})")
        M1(k+1)
        A(f"v_exp_f32 {v(vEx)}, {v(z)}")
        M2(k+1)
        A(f"v_exp_f32 {v(vEx+1)}, {v(z+1)}")
        A(f"v_exp_f32 {v(vEx+2)}, {v(z+2)}")
        A(f"v_exp_f32 {v(vEx+3)}, {v(z+3)}")
        A("s_waitcnt lgkmcnt(0)")
        Ld(k+1+P)
        T(k+2)
        A(f"ds_read_u16 {v(vP0+2*(k%2))}, {v(vL)} offset:{LIST+4*(k+2+P)}")
        A(f"ds_read_u16_d16_hi {v(vEe+(k+1)%2)}, {v(vL)} offset:{LIST+4*(k+3)+2}")
        for h in range(2):
            A(f"v_pk_fma_f32 {v(vN1+2*h,2)}, {v(m+2*h,2)}, {v(vD+2*h,2)}, {v(vN+2*h,2)}")
        for h in range(2):
            A(f"v_pk_fma_f32 {v(vD+2*h,2)}, {v(vD+2*h,2)}, {v(vEx+2*h,2)}, {v(vD+2*h,2)}")
        for h in range(2):
            A(f"v_pk_fma_f32 {v(vN+2*h,2)}, {v(vN+2*h,2)}, {v(vEx+2*h,2)}, {v(vN1+2*h,2)}")
        A(f"s_sub_u32 {s(sT0)}, {s(sT0)}, 1")
        if k < P-1:
            A("s_cbranch_scc1 L_loop_done")
        else:
            A(f"v_add_u32 {v(vL)}, {4*P}, {v(vL)}")
            A("s_cbranch_scc0 L_loop")
    A(f"""
    L_loop_done:
    v_rcp_f32 {v(vEx)}, {v(vD)}
    v_rcp_f32 {v(vEx+1)}, {v(vD+1)}
    v_rcp_f32 {v(vEx+2)}, {v(vD+2)}
    v_rcp_f32 {v(vEx+3)}, {v(vD+3)}
    v_pk_add_f32 {v(vD,2)}, {v(vD,2)}, {v(vD+2,2)}
    v_add_f32 v2, |{v(vN)}|, |{v(vN+1)}|
    v_add_f32 v3, |{v(vN+2)}|, |{v(vN+3)}|
    v_pk_mul_f32 {v(vN,2)}, {v(vN,2)}, {v(vEx,2)}
    v_pk_add_f32 v[2:3], v[2:3], {v(vD,2)}
    v_pk_mul_f32 {v(vN+2,2)}, {v(vN+2,2)}, {v(vEx+2,2)}
    v_add_f32 v2, v2, v3
    v_cmp_ngt_f32 vcc, 0x7b800000, v2
    s_waitcnt vmcnt(0) lgkmcnt(0)
    s_cbranch_vccnz L_safe
    L_silu:
    v_pk_mul_f32 {v(vT,2)}, {v(vN,2)}, {s(sL2E,2)}
    v_pk_mul_f32 {v(vT+2,2)}, {v(vN+2,2)}, {s(sL2E,2)}
    v_exp_f32 {v(vEx)}, {v(vT)}
    v_exp_f32 {v(vEx+1)}, {v(vT+1)}
    v_exp_f32 {v(vEx+2)}, {v(vT+2)}
    v_exp_f32 {v(vEx+3)}, {v(vT+3)}
    v_pk_add_f32 {v(vEx,2)}, {v(vEx,2)}, 1.0 op_sel_hi:[1,0]
    v_pk_add_f32 {v(vEx+2,2)}, {v(vEx+2,2)}, 1.0 op_sel_hi:[1,0]
    v_rcp_f32 {v(vEx)}, {v(vEx)}
    v_rcp_f32 {v(vEx+1)}, {v(vEx+1)}
    v_rcp_f32 {v(vEx+2)}, {v(vEx+2)}
    v_rcp_f32 {v(vEx+3)}, {v(vEx+3)}
    v_pk_mul_f32 {v(vN,2)}, {v(vN,2)}, {v(vEx,2)}
    v_pk_mul_f32 {v(vN+2,2)}, {v(vN+2,2)}, {v(vEx+2,2)}
    v_cvt_pk_bf16_f32 {v(vN1)}, {v(vN)}, {v(vN+1)}
    v_cvt_pk_bf16_f32 {v(vN1+1)}, {v(vN+2)}, {v(vN+3)}
    s_sub_u32 {s(sT0)}, {s(sBA)}, 12
    buffer_store_dwordx2 {v(vN1,2)}, {v(vO)}, {s(sOUT,4)}, {s(sT0+7)} offen {OUTSC}
    s_add_u32 {s(sBA)}, {s(sBA)}, 4
    s_cmp_lt_u32 {s(sT0)}, 4
    s_cbranch_scc1 L_main_batch
    """)
    if DIAG:
        stamp()
        A("s_waitcnt vmcnt(0)")
        stamp()
        dump_stamps(1)
    A("L_main_end:")
    A("s_endpgm")
    def safe_step():
        d = vDAT
        A(f"buffer_load_dwordx4 {v(d,4)}, {v(vP0,2)}, {s(sTAB,4)}, 0 idxen offen")
        T(0)
        A(f"""
        s_waitcnt vmcnt(0)
        v_lshlrev_b32 {v(vN1)}, 16, {v(d)}
        v_and_b32 {v(vN1+1)}, 0xffff0000, {v(d)}
        v_lshlrev_b32 {v(vN1+2)}, 16, {v(d+1)}
        v_and_b32 {v(vN1+3)}, 0xffff0000, {v(d+1)}
        v_pk_add_f32 {v(vT,2)}, {v(vT,2)}, {v(vN1,2)}
        v_pk_add_f32 {v(vT+2,2)}, {v(vT+2,2)}, {v(vN1+2,2)}
        v_lshlrev_b32 {v(vN1)}, 16, {v(d+2)}
        v_and_b32 {v(vN1+1)}, 0xffff0000, {v(d+2)}
        v_lshlrev_b32 {v(vN1+2)}, 16, {v(d+3)}
        v_and_b32 {v(vN1+3)}, 0xffff0000, {v(d+3)}
        """)
        for k in range(4): A(f"v_exp_f32 {v(vEx+k)}, {v(vT+k)}")
        A(f"v_pk_add_f32 {v(vEx,2)}, {v(vEx,2)}, 1.0 op_sel_hi:[1,0]")
        A(f"v_pk_add_f32 {v(vEx+2,2)}, {v(vEx+2,2)}, 1.0 op_sel_hi:[1,0]")
        for k in range(4): A(f"v_rcp_f32 {v(vEx+k)}, {v(vEx+k)}")
        A(f"v_pk_fma_f32 {v(vN,2)}, {v(vN1,2)}, {v(vEx,2)}, {v(vN,2)}")
        A(f"v_pk_fma_f32 {v(vN+2,2)}, {v(vN1+2,2)}, {v(vEx+2,2)}, {v(vN+2,2)}")
    A(f"""
    L_safe:
    v_mul_u32_u24 {v(vL)}, {LSTR}, v31
    v_mul_u32_u24 v2, {XAS}, v31
    v_add_u32 v2, v2, {v(vP0+1)}
    ds_read_b128 {v(vN,4)}, v2 offset:{XAU+128}
    s_max_u32 {s(sT0)}, {s(sTR)}, 1
    L_safe_loop:
    ds_read_b32 v2, {v(vL)} offset:{LIST}
    v_add_u32 {v(vL)}, 4, {v(vL)}
    s_waitcnt lgkmcnt(0)
    v_and_b32 {v(vP0)}, 0xffff, v2
    v_and_b32 {v(vEe)}, 0xffff0000, v2
    """)
    safe_step()
    A(f"""
    s_sub_u32 {s(sT0)}, {s(sT0)}, 1
    s_cmp_lg_u32 {s(sT0)}, 0
    s_cbranch_scc1 L_safe_loop
    s_branch L_silu
    """)
    A(f"""
    L_scan:
    s_waitcnt lgkmcnt(0)
    v_lshlrev_b32 v60, 6, v31
    v_add_u32 v60, {s(sB)}, v60
    v_lshlrev_b32 v56, 2, v1
    v_lshlrev_b32 v57, 1, v1
    s_mov_b32 {s(sT0)}, 0
    L_scan_outer:
    s_lshl_b32 {s(sT0+1)}, {s(sT0)}, 1
    buffer_load_dword v58, v56, {s(sDST,4)}, {s(sT0+1)} offen
    buffer_load_dword v59, v56, {s(sSRC,4)}, {s(sT0+1)} offen
    buffer_load_ushort v61, v57, {s(sE,4)}, {s(sT0)} offen
    s_waitcnt vmcnt(0)
    v_and_b32 v2, 63, v58
    v_cmp_eq_u32 {s(sM,2)}, {s(sB)}, v2
    v_lshlrev_b32 v61, 16, v61
    L_scan_inner:
    s_cmp_eq_u64 {s(sM,2)}, 0
    s_cbranch_scc1 L_scan_next
    s_ff1_i32_b64 {s(sT0+1)}, {s(sM,2)}
    s_bitset0_b64 {s(sM,2)}, {s(sT0+1)}
    v_readlane_b32 {s(sT0+2)}, v58, {s(sT0+1)}
    v_readlane_b32 {s(sT0+3)}, v59, {s(sT0+1)}
    v_readlane_b32 {s(sT0+11)}, v61, {s(sT0+1)}
    s_nop 1
    v_cmp_eq_u32 vcc, {s(sT0+2)}, v60
    s_and_b64 exec, vcc, vcc
    s_cbranch_scc0 L_scan_skip
    v_mov_b32 {v(vP0)}, {s(sT0+3)}
    v_mov_b32 {v(vEe)}, {s(sT0+11)}
    """)
    safe_step()
    A(f"""
    L_scan_skip:
    s_mov_b64 exec, -1
    s_branch L_scan_inner
    L_scan_next:
    s_add_u32 {s(sT0)}, {s(sT0)}, 128
    s_cmp_lt_u32 {s(sT0)}, {E*2}
    s_cbranch_scc1 L_scan_outer
    s_branch L_silu
    """)
    return LDS

body = A
A('.amdgcn_target "amdgcn-amd-amdhsa--gfx950"')
A(".text")
if not FUSE:
    A(".globl prep_kernel")
    A(".type prep_kernel,@function")
A(f".globl {NAME}_kernel")
A(f".type {NAME}_kernel,@function")
lds1 = prep_kernel()
lds2 = main_kernel()
A('.section .rodata,"a"')
for k in ("prep_kernel", f"{NAME}_kernel")[FUSE:]:
    A(".p2align 6")
    A(f".amdhsa_kernel {k}")
    A(""".amdhsa_next_free_vgpr 120
    .amdhsa_next_free_sgpr 102
    .amdhsa_accum_offset 120
    .amdhsa_group_segment_fixed_size 0
    .amdhsa_kernarg_size 80
    .amdhsa_user_sgpr_count 2
    .amdhsa_user_sgpr_kernarg_segment_ptr 1
    .amdhsa_system_sgpr_workgroup_id_x 1
    .end_amdhsa_kernel""")
head = open("cdna_kernels/" + NAME + ".s.ref").read().split("\n")
head = [l for l in head if l.startswith(";") and "@launch" not in l and "launch geometry" not in l and "grid=ceil" not in l]
if FUSE:
    head.append(f"; @launch grid=(256,1,1) block=(1024,1,1) lds={lds2}")
else:
    head.append(f"; @launch kernel=prep_kernel grid=(256,1,1) block=(1024,1,1) lds={lds1}")
    head.append(f"; @launch kernel={NAME}_kernel grid=(256,1,1) block=(1024,1,1) lds={lds2}")
open(sys.argv[1], "w").write("\n".join(head) + "\n" + A.text())
```

```python
import sys
from asmlib import Asm, v, s

NAME = "gather_scatter__edge_featured_mpnn_egc__graph"
N, E = 10000, 160000
SLICE = 10240 * 256
SLOT0 = 0x500000
FLAG0 = 0x700000
EPOCH = 0x710000
WS_USED = EPOCH + 256
STAMP0 = 0x800000
SCAP = 48
NCAP = 48
LSTR = 196
ISTR = 392
NLOG2E = 0xBFB8AA3B

opts = dict(a.split("=") for a in sys.argv[2:])
DIAG = int(opts.get("diag", 0))
P = int(opts.get("P", 8))
NPF = int(opts.get("npf", 0))
PRIO = int(opts.get("prio", 1))
CPF = int(opts.get("cpf", 1))
OUTSC = opts.get("outsc", "sc1")
GSC = opts.get("gsc", "sc1")
SPIN = 30000

CNT2, HIST, ORDER, FLAG = 64, 512, 768, 1088
LIST = 1280
WB = LIST + 16384
WV, WA, WU = WB + 16384, WB + 32768, WB + 49152
XL = WB + 65536
IMG = XL + 20480
XAS = 528
XAU = IMG + 16384
LDSZ = 163840
CBASE = LDSZ - 512
assert XAU + 80*XAS <= CBASE + 384

A = Asm()
sX, sE, sSRC, sDST, sU, sV, sG, sOUTP = 4, 6, 8, 10, 12, 14, 16, 18
sWS, sTAB, sOUT = 20, 24, 28
sW, sJ, sF, sB, sC, sQB, sTAG = 32, 33, 34, 35, 36, 37, 38
sL2E = 40
sT0 = 44
sM = 60
sST = 80

nst = [0]
def stamp(k):
    if DIAG:
        A(f"s_memrealtime {s(sST+2*k,2)}")
        A("s_waitcnt lgkmcnt(0)")

def dump_stamps():
    if DIAG:
        A("s_mov_b64 exec, 1")
        A(f"s_lshl_b32 {s(sT0)}, s2, 4")
        A(f"s_add_u32 {s(sT0)}, {s(sT0)}, {s(sW)}")
        A(f"s_lshl_b32 {s(sT0)}, {s(sT0)}, 6")
        A(f"s_add_u32 {s(sT0)}, {s(sT0)}, {STAMP0}")
        A("v_mov_b32 v1, 0")
        for k in range(10):
            A(f"v_mov_b32 v2, {s(sST+2*k)}")
            A(f"buffer_store_dword v2, v1, {s(sWS,4)}, {s(sT0)} offen offset:{4*k}")

WF, XF, AC = 8, 40, 88
vXa, vWa, vSo, vXo, vCraw, vTagB = 4, 112, 113, 114, 116, 118
vDum = 119

def kernel():
    A(".p2align 8")
    A(f"{NAME}_kernel:")
    A(f"""
    s_cmp_ge_u32 s2, 256
    s_cbranch_scc1 L_end
    """)
    if DIAG:
        for k in range(10):
            A(f"s_mov_b64 {s(sST+2*k,2)}, 0")
        A(f"s_memrealtime {s(sST,2)}")
    A(f"""
    s_load_dwordx16 s[4:19], s[0:1], 0
    s_load_dwordx2 {s(sWS,2)}, s[0:1], 72
    v_lshrrev_b32 v1, 6, v0
    v_lshlrev_b32 v2, 4, v0
    v_readfirstlane_b32 {s(sW)}, v1
    s_lshr_b32 {s(sJ)}, s2, 3
    s_and_b32 {s(sT0)}, s2, 7
    s_lshr_b32 {s(sC)}, s2, 5
    """)
    if CPF:
        A(f"""
        s_cmp_lg_u32 {s(sW)}, 0
        s_cbranch_scc1 L_nocpf
        s_getpc_b64 {s(sT0+2,2)}
        v_lshlrev_b32 v3, 7, v0
        v_min_u32 v3, L_code_end-L_nocpf, v3
        global_load_dword {v(vDum)}, v3, {s(sT0+2,2)}
        L_nocpf:
        """)
    A(f"""
    s_lshl3_add_u32 {s(sC)}, {s(sT0)}, {s(sC)}
    s_mul_i32 {s(sT0+1)}, {s(sC)}, 10000
    v_mov_b32 v8, -1
    v_mov_b32 v9, -1
    v_mov_b64 v[10:11], v[8:9]
    v_add_u32 v12, {IMG}, v2
    ds_write_b128 v12, v[8:11]
    v_add_u32 v2, {s(sT0+1)}, v2
    v_lshrrev_b32 v3, 1, v2
    s_and_b32 {s(sF)}, s2, 1
    s_bfe_u32 {s(sB)}, s2, 0x20001
    s_lshl_b32 {s(sB)}, {s(sB)}, 5
    s_add_u32 {s(sB)}, {s(sB)}, {s(sJ)}
    v_lshrrev_b32 v5, 3, v0
    v_lshrrev_b32 v6, 4, v0
    v_and_b32 v4, 2, v5
    v_and_or_b32 v4, v6, 4, v4
    v_xor_b32 v4, v4, v0
    v_and_b32 v4, 7, v4
    s_lshl_b32 {s(sT0+4)}, {s(sF)}, 7
    v_lshl_or_b32 v4, v4, 4, {s(sT0+4)}
    v_lshl_or_b32 v4, v5, 8, v4
    v_add_u32 v7, 32768, v4
    v_xor_b32 v5, v6, v0
    v_and_b32 v5, 15, v5
    s_lshl_b32 {s(sT0+5)}, {s(sB)}, 8
    v_lshl_or_b32 v5, v5, 4, {s(sT0+5)}
    v_lshl_or_b32 v5, v6, 15, v5
    s_lshl_b32 {s(sT0+6)}, {s(sW)}, 10
    v_cmp_gt_u32 vcc, 625, v0
    s_add_u32 m0, {s(sT0+6)}, {WB}
    s_cmp_ge_u32 {s(sW)}, 10
    s_cbranch_scc1 L_noedge
    s_mov_b64 exec, vcc
    s_waitcnt lgkmcnt(0)
    global_load_dwordx4 v[8:11], v2, {s(sDST,2)}
    global_load_dwordx4 v[12:15], v2, {s(sSRC,2)}
    global_load_dwordx2 v[16:17], v3, {s(sE,2)}
    s_mov_b64 exec, -1
    s_branch L_dma
    L_noedge:
    v_and_b32 v1, 31, v0
    v_mul_u32_u24 v12, {ISTR}, v1
    v_add_u32 v12, {IMG}, v12
    v_lshlrev_b32 v13, 2, v1
    v_add_u32 v13, {CBASE}, v13
    ds_write_b32 v13, v12 offset:384
    s_waitcnt lgkmcnt(0)
    s_cmp_lt_u32 {s(sW)}, 12
    s_cbranch_scc1 L_dma
    v_add_u32 v6, {16*32768}, v5
    v_min_u32 v6, {N*256-16}, v6
    s_add_u32 m0, {s(sT0+6)}, {XL+4096}
    s_nop 0
    global_load_lds_dwordx4 v6, {s(sX,2)}
    s_add_u32 m0, {s(sT0+6)}, {WB}
    s_nop 0
    L_dma:
    global_load_lds_dwordx4 v7, {s(sG,2)}
    s_add_u32 m0, {s(sT0+6)}, {WV}
    s_mov_b64 {s(sM+8,2)}, vcc
    global_load_lds_dwordx4 v4, {s(sV,2)}
    s_add_u32 m0, {s(sT0+6)}, {XL}
    s_add_u32 {s(sT0+2)}, {s(sWS)}, {EPOCH}
    global_load_lds_dwordx4 v5, {s(sX,2)}
    s_addc_u32 {s(sT0+3)}, {s(sWS+1)}, 0
    s_load_dword {s(sTAG)}, {s(sT0+2,2)}, 0
    s_add_u32 m0, {s(sT0+6)}, {WA}
    s_barrier
    global_load_lds_dwordx4 v4, {s(sG,2)}
    s_add_u32 m0, {s(sT0+6)}, {WU}
    v_and_b32 v1, 63, v0
    global_load_lds_dwordx4 v4, {s(sU,2)}
    """)
    stamp(1)
    A(f"""
    v_and_b32 v2, 15, v0
    s_add_u32 {s(sT0+7)}, {s(sT0+4)}, 65536
    v_lshl_add_u32 v3, v2, 3, {s(sT0+7)}
    global_load_dwordx2 {v(vCraw,2)}, v3, {s(sG,2)}
    s_mov_b32 {s(sWS+2)}, {STAMP0 + 0x100000 if DIAG else WS_USED}
    s_mov_b32 {s(sWS+3)}, 0x20000
    s_mov_b32 {s(sL2E)}, {NLOG2E}
    s_mov_b32 {s(sL2E+1)}, {NLOG2E}
    s_and_b32 {s(sQB)}, {s(sJ)}, 3
    s_mul_i32 {s(sT0+8)}, {s(sF)}, {SLICE}
    v_mov_b32 {v(vSo)}, 0
    s_cmp_ge_u32 {s(sW)}, 8
    s_cbranch_scc1 L_nogsetup
    """)
    A(f"""
    s_lshr_b32 {s(sT0)}, {s(sW)}, 2
    s_mul_i32 {s(sT0)}, {s(sT0)}, 3
    s_and_b32 {s(sT0+1)}, {s(sW)}, 3
    s_lshl_b32 {s(sT0+2)}, {s(sT0)}, 12
    s_add_u32 {s(sT0+2)}, {s(sT0+2)}, {XL}
    v_lshrrev_b32 v3, 4, v1
    v_xor_b32 {v(vXa)}, v2, v3
    v_lshlrev_b32 {v(vXa)}, 4, {v(vXa)}
    v_lshl_or_b32 {v(vXa)}, v2, 8, {v(vXa)}
    v_add_u32 {v(vXa)}, {s(sT0+2)}, {v(vXa)}
    v_xor_b32 {v(vXa+1)}, 64, {v(vXa)}
    v_xor_b32 {v(vXa+2)}, 128, {v(vXa)}
    v_xor_b32 {v(vXa+3)}, 192, {v(vXa)}
    v_bfe_u32 {v(vSo)}, v1, 3, 2
    v_xor_b32 {v(vSo)}, {s(sT0+1)}, {v(vSo)}
    v_and_b32 {v(vWa)}, 3, v1
    v_lshlrev_b32 {v(vWa)}, 3, {v(vWa)}
    v_lshl_or_b32 {v(vWa)}, {v(vSo)}, 5, {v(vWa)}
    v_bfe_u32 {v(vSo)}, v1, 2, 2
    v_lshl_or_b32 {v(vWa)}, {v(vSo)}, 7, {v(vWa)}
    v_lshl_or_b32 {v(vWa)}, v3, 10, {v(vWa)}
    v_add_u32 {v(vWa)}, {WB}, {v(vWa)}
    v_lshlrev_b32 v3, 4, v3
    v_lshl_or_b32 {v(vSo)}, v2, 15, v3
    s_lshl_b32 {s(sT0+1)}, {s(sT0+1)}, 6
    s_mul_i32 {s(sT0+2)}, {s(sT0)}, {16*XAS}
    s_add_u32 {s(sT0+2)}, {s(sT0+2)}, {s(sT0+1)}
    s_add_u32 {s(sT0+2)}, {s(sT0+2)}, {XAU}
    v_mul_u32_u24 {v(vXo)}, {XAS}, v2
    v_add3_u32 {v(vXo)}, {v(vXo)}, v3, {s(sT0+2)}
    s_lshl_b32 {s(sT0)}, {s(sT0)}, 19
    s_add_u32 {s(sT0+9)}, {s(sT0+8)}, {s(sT0+5)}
    s_add_u32 {s(sT0+9)}, {s(sT0+9)}, {s(sT0+1)}
    s_add_u32 {s(sT0+9)}, {s(sT0+9)}, {s(sT0)}
    L_nogsetup:
    s_cmp_ge_u32 {s(sW)}, 10
    s_cbranch_scc1 L_b1
    """)
    assert XL % 256 == 0
    A(f"""
    s_mul_i32 {s(sT0)}, {s(sQB)}, -128
    s_movk_i32 {s(sT0+1)}, 0x1fc
    s_mov_b32 {s(sT0+2)}, 0xffff0000
    v_mov_b32 v18, 8
    v_mov_b32 v19, {CBASE}
    s_mov_b64 exec, {s(sM+8,2)}
    s_waitcnt vmcnt(8)
    """)
    for i in range(4):
        A(f"""
        v_lshl_add_u32 {v(20+i)}, {v(8+i)}, 2, {s(sT0)}
        v_and_or_b32 {v(20+i)}, {v(20+i)}, {s(sT0+1)}, v19
        ds_add_rtn_u32 {v(20+i)}, {v(20+i)}, v18 offset:384
        """)
    A(f"""
    s_waitcnt vmcnt(6)
    v_lshl_or_b32 v12, v16, 16, v12
    v_and_or_b32 v13, v16, {s(sT0+2)}, v13
    v_lshl_or_b32 v14, v17, 16, v14
    v_and_or_b32 v15, v17, {s(sT0+2)}, v15
    s_waitcnt lgkmcnt(0)
    """)
    for i in range(4):
        A(f"ds_write2_b32 {v(20+i)}, {v(12+i)}, {v(8+i)} offset0:0 offset1:1")
    A(f"""
    s_mov_b64 exec, -1
    L_b1:
    s_waitcnt vmcnt(3) lgkmcnt(0)
    s_barrier
    """)
    stamp(2)
    A(f"""
    s_cmp_ge_u32 {s(sW)}, 8
    s_cbranch_scc1 L_rwave
    """)
    def rdW(st, base):
        for m in range(2):
            for hh in range(2):
                A(f"ds_read_b64_tr_b16 {v(WF+16*m+4*st+2*hh,2)}, {v(vWa)} offset:{base+m*16384+st*4096+hh*512}")
    def rdX(t, st):
        A(f"ds_read_b128 {v(XF+16*t+4*st,4)}, {v(vXa+st)} offset:{t*4096}")
    def mm1(t, st, m):
        acc = v(AC+8*t+4*m, 4)
        A(f"v_mfma_f32_16x16x32_bf16 {acc}, {v(WF+16*m+4*st,4)}, {v(XF+16*t+4*st,4)}, {acc if st else 0}")
    def mm(t, st):
        mm1(t, st, 0); mm1(t, st, 1)
    def epi1_ops(t):
        a = AC + 8*t
        ops = [f"v_mul_f32 {v(a+k)}, {s(sL2E)}, {v(a+k)}" for k in range(4)]
        ops += [f"v_cvt_pk_bf16_f32 {v(a+k)}, {v(a+2*k)}, {v(a+2*k+1)}" for k in range(4)]
        ops += [f"buffer_store_dwordx4 {v(a,4)}, {v(vSo)}, {s(sWS,4)}, {s(sT0+9)} offen sc1", f"s_add_u32 {s(sT0+9)}, {s(sT0+9)}, {16*32768}"]
        return ops
    def epi2_ops(t):
        a = AC + 8*t
        ops = [f"v_mul_f32 {v(a+k)}, {s(sL2E)}, {v(a+k)}" for k in range(4)]
        ops += [f"ds_write_b128 {v(vXo)}, {v(a+4,4)} offset:{t*16*XAS+256}", f"ds_write_b128 {v(vXo)}, {v(a,4)} offset:{t*16*XAS}"]
        return ops
    def tiles12(epi, tag):
        for st in range(4): mm(1, st)
        A(f"s_cbranch_scc1 L_two_{tag}")
        e0 = epi(0)
        k = 0
        for st in range(4):
            for m in range(2):
                mm1(2, st, m)
                for o in e0[k:k+2]: A(o)
                k += 2
        for o in epi(1): A(o)
        if tag == "g2": A("s_nop 0")
        for o in epi(2): A(o)
        A(f"s_branch L_done_{tag}")
        A(f"L_two_{tag}:")
        for o in epi(0): A(o)
        A("s_nop 1")
        for o in epi(1): A(o)
        A(f"L_done_{tag}:")
    for st in range(3):
        rdW(st, 0); rdX(0, st)
    A("s_waitcnt lgkmcnt(10)"); mm(0, 0)
    rdW(3, 0); rdX(0, 3)
    A("s_waitcnt lgkmcnt(10)"); mm(0, 1)
    for st in range(4): rdX(1, st)
    A("s_waitcnt lgkmcnt(9)"); mm(0, 2)
    for st in range(4): rdX(2, st)
    A("s_waitcnt lgkmcnt(8)"); mm(0, 3)
    A(f"s_cmp_ge_u32 {s(sW)}, 4")
    A("s_waitcnt vmcnt(0) lgkmcnt(0)")
    tiles12(epi1_ops, "g1")
    stamp(3)
    A("s_barrier")
    for st in range(3): rdW(st, 32768)
    A("s_waitcnt lgkmcnt(8)"); mm(0, 0)
    rdW(3, 32768)
    A("s_waitcnt lgkmcnt(8)"); mm(0, 1)
    A("s_waitcnt lgkmcnt(4)"); mm(0, 2)
    A(f"s_cmp_ge_u32 {s(sW)}, 4")
    A("s_waitcnt lgkmcnt(0)"); mm(0, 3)
    tiles12(epi2_ops, "g2")
    A("s_branch L_pre3")
    A(f"""
    L_rwave:
    v_subrev_u32 v3, 512, v0
    v_lshrrev_b32 v4, 4, v3
    v_mul_u32_u24 v5, {ISTR}, v4
    v_lshl_add_u32 v5, v2, 3, v5
    v_add_u32 v5, {IMG}, v5
    ds_read2_b32 v[8:9], v5 offset0:0 offset1:32
    ds_read2_b32 v[10:11], v5 offset0:64 offset1:65
    ds_read2_b32 v[12:13], v5 offset0:1 offset1:33
    v_and_b32 v6, 31, v0
    v_lshlrev_b32 v7, 2, v6
    v_add_u32 v7, {CBASE}, v7
    ds_read_b32 v14, v7 offset:384
    v_mul_u32_u24 v6, {ISTR}, v6
    v_add_u32 v6, {IMG + 8*SCAP}, v6
    v_mad_u32_u24 {v(vTagB)}, v2, 37, {s(sTAG)}
    v_lshlrev_b32 v15, 24, {v(vTagB)}
    v_lshlrev_b32 v16, 4, v2
    v_lshl_or_b32 v16, v4, 14, v16
    s_lshl_b32 {s(sT0)}, {s(sQB)}, 19
    s_lshl_b32 {s(sT0+1)}, {s(sC)}, 8
    s_add_u32 {s(sT0)}, {s(sT0)}, {s(sT0+1)}
    s_add_u32 {s(sT0)}, {s(sT0)}, {SLOT0}
    s_waitcnt lgkmcnt(0)
    v_cmp_gt_u32 vcc, v14, v6
    v_bfe_u32 v12, v12, 7, 8
    v_bfe_u32 v13, v13, 7, 8
    v_bfe_u32 v11, v11, 7, 8
    v_lshl_or_b32 v12, v13, 8, v12
    v_lshl_or_b32 v11, v11, 16, v12
    s_cbranch_vccz L_noovf
    v_mov_b32 v11, 0xfefefe
    L_noovf:
    v_or_b32 v11, v11, v15
    s_waitcnt vmcnt(0)
    buffer_store_dwordx4 v[8:11], v16, {s(sWS,4)}, {s(sT0)} offen sc1
    v_mov_b32 v20, 0xffff
    v_mov_b32 v21, v20
    v_mov_b64 v[22:23], v[20:21]
    v_lshlrev_b32 v4, 4, v3
    ds_write_b128 v4, v[20:23] offset:{LIST}
    ds_write_b128 v4, v[20:23] offset:{LIST+8192}
    v_mul_u32_u24 v5, {LSTR}, v3
    v_add_u32 v5, {LIST}, v5
    v_cmp_gt_u32 vcc, 112, v3
    v_lshlrev_b32 v4, 2, v3
    v_mov_b32 v6, 304
    v_cndmask_b32 v5, 0, v5, vcc
    v_cmp_gt_u32 vcc, v6, v3
    s_and_b64 exec, vcc, vcc
    ds_write_b32 v4, v5 offset:{CNT2}
    s_mov_b64 exec, -1
    """)
    stamp(3)
    A(f"""
    s_barrier
    L_pre3:
    """)
    vSl, vFl = 24, 25
    A(f"""
    v_mad_u32_u24 {v(vTagB)}, v2, 37, {s(sTAG)}
    v_and_b32 {v(vTagB)}, 0xff, {v(vTagB)}
    s_add_u32 {s(sTAG)}, {s(sTAG)}, 1
    v_lshlrev_b32 {v(vSl)}, 4, v0
    s_lshl_b32 {s(sT0)}, {s(sB)}, 14
    s_add_u32 {s(sT0)}, {s(sT0)}, {SLOT0}
    v_lshlrev_b32 {v(vFl)}, 10, v1
    v_mov_b32 v26, {s(sTAG)}
    s_lshl_b32 {s(sT0+1)}, s2, 2
    s_add_u32 {s(sT0+1)}, {s(sT0+1)}, {FLAG0}
    s_mov_b32 {s(sT0+3)}, 0
    s_mov_b32 {s(sT0+15)}, 0
    s_cmp_lg_u32 {s(sW)}, 0
    s_waitcnt vmcnt(0) lgkmcnt(0)
    s_barrier
    s_cbranch_scc1 L_slot
    s_mov_b64 exec, 0xff
    buffer_store_dword v26, {v(vFl)}, {s(sWS,4)}, {s(sT0+1)} offen sc1
    s_mov_b64 exec, -1
    L_slot:
    buffer_load_dwordx4 v[8:11], {v(vSl)}, {s(sWS,4)}, {s(sT0)} offen sc1
    """)
    stamp(4)
    vC, vXA, vN, vD, vI, vP0, vEe, vL, vO = 4, 8, 12, 16, 20, 22, 26, 28, 29
    vT, vMm, vEx, vN1, vDAT = 32, 40, 48, 52, 64
    sBA, sTR, sFL, sOO = sT0+10, sT0+11, sT0+12, sT0+13
    A(f"""
    v_lshlrev_b32 {v(vC)}, 16, {v(vCraw)}
    v_and_b32 {v(vC+1)}, 0xffff0000, {v(vCraw)}
    v_lshlrev_b32 {v(vC+2)}, 16, {v(vCraw+1)}
    v_and_b32 {v(vC+3)}, 0xffff0000, {v(vCraw+1)}
    v_pk_mul_f32 {v(vC,2)}, {v(vC,2)}, {s(sL2E,2)}
    v_pk_mul_f32 {v(vC+2,2)}, {v(vC+2,2)}, {s(sL2E,2)}
    v_and_b32 v30, 1, v1
    v_lshlrev_b32 v30, 4, v30
    v_mov_b32 v3, 0x3f80
    v_lshlrev_b32 v3, v30, v3
    v_and_b32 v30, 2, v1
    v_cmp_eq_u32 vcc, 0, v30
    v_lshlrev_b32 {v(vP0+1)}, 4, v2
    v_lshrrev_b32 v30, 4, v1
    v_cndmask_b32 {v(vI)}, 0, v3, vcc
    v_sub_u32 {v(vI+1)}, v3, {v(vI)}
    v_lshlrev_b32 v30, 2, v30
    s_xor_b32 {s(sT0+2)}, {s(sW)}, 3
    s_bitcmp1_b32 {s(sW)}, 2
    s_cselect_b32 {s(sBA)}, {s(sT0+2)}, {s(sW)}
    s_add_u32 {s(sOO)}, {s(sT0+5)}, {s(sT0+4)}
    s_add_u32 {s(sTAB)}, {s(sWS)}, {s(sT0+8)}
    s_addc_u32 {s(sTAB+1)}, {s(sWS+1)}, 0x1000000
    s_mov_b32 {s(sTAB+2)}, {N}
    s_mov_b32 {s(sTAB+3)}, 0x20000
    s_mov_b64 {s(sOUT,2)}, {s(sOUTP,2)}
    s_mov_b32 {s(sOUT+2)}, {N*256}
    s_mov_b32 {s(sOUT+3)}, 0x20000
    v_mov_b32 v12, 4
    v_mov_b32 v13, 2
    s_movk_i32 {s(sT0+2)}, 0xfe
    L_slotchk:
    s_waitcnt vmcnt(0)
    v_cmp_ne_u32_sdwa vcc, {v(vTagB)}, v11 src0_sel:DWORD src1_sel:BYTE_3
    s_cbranch_vccnz L_slotretry
    L_slotok:
    """)
    for p in range(3):
        A(f"v_cmp_gt_u32_sdwa {s(sM+2*p,2)}, {s(sT0+2)}, v11 src0_sel:DWORD src1_sel:BYTE_{p}")
        A(f"v_lshlrev_b32_sdwa {v(14+p)}, v13, v11 dst_sel:DWORD dst_unused:UNUSED_PAD src0_sel:DWORD src1_sel:BYTE_{p}")
        A(f"s_mov_b64 exec, {s(sM+2*p,2)}")
        A(f"ds_add_rtn_u32 {v(14+p)}, {v(14+p)}, v12 offset:{CNT2}")
        A("s_mov_b64 exec, -1")
    A(f"v_cmp_eq_u32_sdwa vcc, {s(sT0+2)}, v11 src0_sel:DWORD src1_sel:BYTE_0")
    A(f"""
    s_cmp_lg_u32 {s(sW)}, 15
    s_cbranch_scc1 L_nopoll0
    s_and_b32 {s(sT0+1)}, s2, 7
    s_lshl_b32 {s(sT0+1)}, {s(sT0+1)}, 10
    s_add_u32 {s(sT0+1)}, {s(sT0+1)}, {FLAG0}
    v_lshlrev_b32 {v(vFl)}, 4, v1
    buffer_load_dwordx4 v[56:59], {v(vFl)}, {s(sWS,4)}, {s(sT0+1)} offen sc1
    L_nopoll0:
    """)
    A("s_waitcnt lgkmcnt(0)")
    for p in range(3):
        A(f"s_mov_b64 exec, {s(sM+2*p,2)}")
        A(f"ds_write_b32 {v(14+p)}, {v(8+p)}")
    A(f"""
    s_mov_b64 exec, vcc
    v_mov_b32 v14, 0
    ds_write_b32 v14, v12 offset:{FLAG}
    s_mov_b64 exec, -1
    s_cmp_lg_u32 {s(sW)}, 0
    s_waitcnt lgkmcnt(0)
    s_barrier
    """)
    stamp(5)
    if DIAG: A(f"s_cmp_lg_u32 {s(sW)}, 0")
    A(f"""
    s_cbranch_scc1 L_nosort
    v_lshlrev_b32 v2, 2, v1
    ds_read_b32 v8, v2 offset:{CNT2}
    ds_read_b32 v9, v2 offset:{CNT2+256}
    v_mul_u32_u24 v10, {LSTR}, v1
    v_add_u32 v10, {LIST+252}, v10
    v_add_u32 v11, {64*LSTR}, v10
    v_mov_b32 v24, 1
    s_waitcnt lgkmcnt(0)
    v_sub_u32 v12, v10, v8
    v_sub_u32 v13, v11, v9
    v_max_i32 v12, 0, v12
    v_max_i32 v13, 0, v13
    ds_add_rtn_u32 v16, v12, v24 offset:{HIST}
    s_mov_b64 exec, 0xffff
    ds_add_rtn_u32 v17, v13, v24 offset:{HIST}
    v_lshl_or_b32 v9, v13, 8, v1
    v_add_u32 v9, 64, v9
    s_mov_b64 exec, -1
    ds_read_b32 v19, v2 offset:{HIST}
    v_lshl_or_b32 v8, v12, 8, v1
    s_waitcnt lgkmcnt(0)
    v_add_u32_dpp v18, v19, v19 row_shr:1 row_mask:0xf bank_mask:0xf bound_ctrl:1
    s_nop 1
    v_add_u32_dpp v18, v18, v18 row_shr:2 row_mask:0xf bank_mask:0xf bound_ctrl:1
    s_nop 1
    v_add_u32_dpp v18, v18, v18 row_shr:4 row_mask:0xf bank_mask:0xf bound_ctrl:1
    s_nop 1
    v_add_u32_dpp v18, v18, v18 row_shr:8 row_mask:0xf bank_mask:0xf bound_ctrl:1
    s_nop 1
    v_add_u32_dpp v18, v18, v18 row_bcast:15 row_mask:0xa bank_mask:0xf
    s_nop 1
    v_add_u32_dpp v18, v18, v18 row_bcast:31 row_mask:0xc bank_mask:0xf
    v_sub_u32 v18, v18, v19
    ds_bpermute_b32 v12, v12, v18
    ds_bpermute_b32 v13, v13, v18
    s_waitcnt lgkmcnt(0)
    v_add_lshl_u32 v12, v12, v16, 2
    v_add_lshl_u32 v13, v13, v17, 2
    ds_write_b32 v12, v8 offset:{ORDER}
    s_mov_b64 exec, 0xffff
    ds_write_b32 v13, v9 offset:{ORDER}
    s_mov_b64 exec, -1
    s_branch L_b5
    L_nosort:
    """)
    if NPF:
        A(f"""
        s_cmp_eq_u32 {s(sW)}, 15
        s_cbranch_scc1 L_nopf
        s_lshl4_add_u32 {s(sT0+2)}, {s(sJ)}, {s(sW)}
        s_mul_i32 {s(sT0+2)}, {s(sT0+2)}, {40*128}
        s_add_u32 {s(sT0+2)}, {s(sT0+2)}, {s(sT0+8)}
        v_lshlrev_b32 v2, 7, v1
        s_mov_b64 exec, {(1 << NPF) - 1}
        buffer_load_dword {v(vDum)}, v2, {s(sWS,4)}, {s(sT0+2)} offen sc1
        s_mov_b64 exec, -1
        s_branch L_b5
        L_nopf:
        """)
    else:
        A(f"""
        s_cmp_lg_u32 {s(sW)}, 15
        s_cbranch_scc1 L_b5
        """)
    A(f"""
    L_poll:
    s_waitcnt vmcnt(0)
    v_xor_b32 v56, {s(sTAG)}, v56
    v_xor_b32 v57, {s(sTAG)}, v57
    v_xor_b32 v58, {s(sTAG)}, v58
    v_xor_b32 v59, {s(sTAG)}, v59
    v_or3_b32 v56, v56, v57, v58
    v_or_b32 v56, v56, v59
    v_cmp_ne_u32 vcc, 0, v56
    s_cbranch_vccz L_pollok
    buffer_load_dwordx4 v[56:59], {v(vFl)}, {s(sWS,4)}, {s(sT0+1)} offen sc1
    s_add_u32 {s(sT0+3)}, {s(sT0+3)}, 1
    s_cmp_lt_u32 {s(sT0+3)}, {SPIN}
    s_cbranch_scc1 L_poll
    L_pollok:
    s_cmp_lg_u32 s2, 0
    s_cbranch_scc1 L_b5
    s_mov_b64 exec, 1
    v_mov_b32 v2, {EPOCH}
    v_mov_b32 v3, {s(sTAG)}
    buffer_store_dword v3, v2, {s(sWS,4)}, 0 offen sc1
    s_mov_b64 exec, -1
    L_b5:
    v_mov_b32 {v(vP0+3)}, {v(vP0+1)}
    v_mov_b64 {v(vEe,2)}, 0
    s_waitcnt lgkmcnt(0)
    s_barrier
    """)
    stamp(6)
    if DIAG:
        A(f"s_lshl_b32 {s(sST+18)}, {s(sT0+15)}, 16")
        A(f"s_or_b32 {s(sST+18)}, {s(sST+18)}, {s(sT0+3)}")
        A(f"s_or_b32 {s(sST+18)}, {s(sST+18)}, 0x80000000")
    if PRIO:
        A(f"""
        s_cmp_lt_u32 {s(sW)}, 12
        s_cbranch_scc1 L_batch
        s_setprio 1
        """)
    A(f"""
    L_batch:
    s_lshl_b32 {s(sT0)}, {s(sBA)}, 4
    v_add_u32 v2, {s(sT0)}, v30
    v_mov_b32 v3, 0
    ds_read_b32 v31, v2 offset:{ORDER}
    """)
    A(f"ds_read_b32 v60, v3 offset:{ORDER}")
    A(f"ds_read_b32 v3, v3 offset:{FLAG}")
    for k in range(P):
        A(f"v_mov_b32 {v(vDAT+4*k+1)}, {v(vP0+1)}")
    A(f"""
    v_mov_b32 {v(vD)}, 1.0
    v_mov_b32 {v(vD+1)}, 1.0
    v_mov_b64 {v(vD+2,2)}, {v(vD,2)}
    s_waitcnt lgkmcnt(0)
    v_readfirstlane_b32 {s(sTR)}, v31
    v_and_b32 v31, 0xff, v31
    v_mul_u32_u24 {v(vL)}, {LSTR}, v31
    """)
    for k in range(P):
        A(f"ds_read_u16 {v(vDAT+4*k)}, {v(vL)} offset:{LIST+4*k}")
    A(f"""
    v_mul_u32_u24 v2, {XAS}, v31
    v_readfirstlane_b32 {s(sFL)}, v3
    v_readfirstlane_b32 {s(sT0+1)}, v60
    s_mov_b32 {s(sT0)}, {XAU}
    v_add3_u32 v2, v2, {v(vP0+1)}, {s(sT0)}
    ds_read_u16_d16_hi {v(vEe)}, {v(vL)} offset:{LIST+2}
    ds_read_u16_d16_hi {v(vEe+1)}, {v(vL)} offset:{LIST+6}
    ds_read_b128 {v(vXA,4)}, v2
    ds_read_b128 {v(vN,4)}, v2 offset:256
    ds_read_u16 {v(vP0+2*(P%2))}, {v(vL)} offset:{LIST+4*P}
    ds_read_u16 {v(vP0+2*((P+1)%2))}, {v(vL)} offset:{LIST+4*P+4}
    s_lshr_b32 {s(sTR)}, {s(sTR)}, 10
    s_sub_u32 {s(sTR)}, 63, {s(sTR)}
    s_cmp_lt_u32 {s(sT0+1)}, {(63-NCAP) << 10}
    s_cselect_b32 {s(sFL)}, 1, {s(sFL)}
    v_lshrrev_b32 {v(vO)}, 1, {v(vP0+1)}
    v_lshl_or_b32 {v(vO)}, v31, 15, {v(vO)}
    s_cmp_lg_u32 {s(sFL)}, 0
    s_cbranch_scc1 L_scan
    """)
    for k in range(P):
        A(f"s_waitcnt lgkmcnt({P-1-k+6})")
        A(f"buffer_load_dwordx4 {v(vDAT+4*k,4)}, {v(vDAT+4*k,2)}, {s(sTAB,4)}, 0 idxen offen {GSC}")
    def T(st):
        t = vT + 4*(st % 2)
        sel = "op_sel:[1,0,0] op_sel_hi:[1,1,1]" if st % 2 else "op_sel_hi:[0,1,1]"
        A(f"v_pk_fma_f32 {v(t,2)}, {v(vEe,2)}, {v(vC,2)}, {v(vXA,2)} {sel}")
        A(f"v_pk_fma_f32 {v(t+2,2)}, {v(vEe,2)}, {v(vC+2,2)}, {v(vXA+2,2)} {sel}")
    def M1(st):
        t = vT + 4*(st % 2); d = vDAT + 4*(st % P)
        A(f"v_mfma_f32_4x4x4_16b_bf16 {v(t,4)}, {v(vI,2)}, {v(d,2)}, {v(t,4)}")
    def M2(st):
        m = vMm + 4*(st % 2); d = vDAT + 4*(st % P)
        A(f"v_mfma_f32_4x4x4_16b_bf16 {v(m,4)}, {v(vI,2)}, {v(d+2,2)}, 0")
    def Ld(st):
        A(f"buffer_load_dwordx4 {v(vDAT+4*(st%P),4)}, {v(vP0+2*(st%2),2)}, {s(sTAB,4)}, 0 idxen offen {GSC}")
    A(f"""
    s_max_u32 {s(sTR)}, {s(sTR)}, 1
    s_min_u32 {s(sT0+1)}, {s(sTR)}, {P+1}
    s_sub_u32 {s(sT0+1)}, {s(sT0+1)}, 1
    s_waitcnt lgkmcnt(0)
    """)
    T(0); T(1)
    A(f"ds_read_u16_d16_hi {v(vEe)}, {v(vL)} offset:{LIST+4*2+2}")
    A(f"s_waitcnt vmcnt({P-1})")
    M1(0); M2(0)
    A(f"s_sub_u32 {s(sT0)}, {s(sTR)}, {P+2}")
    Ld(P)
    A("s_cbranch_scc1 L_drain0")
    def body(k, drain):
        z = vT + 4*(k % 2); m = vMm + 4*(k % 2)
        A(f"s_waitcnt vmcnt({P-1})")
        M1(k+1)
        A(f"v_exp_f32 {v(vEx)}, {v(z)}")
        M2(k+1)
        A(f"v_exp_f32 {v(vEx+1)}, {v(z+1)}")
        A(f"v_exp_f32 {v(vEx+2)}, {v(z+2)}")
        A(f"v_exp_f32 {v(vEx+3)}, {v(z+3)}")
        A("s_waitcnt lgkmcnt(0)")
        if drain:
            A(f"buffer_load_dword {v(vDum)}, off, {s(sOUT,4)}, {s(sOUT+2)}")
        else:
            Ld(k+1+P)
        T(k+2)
        if not drain:
            A(f"ds_read_u16 {v(vP0+2*((k+P)%2))}, {v(vL)} offset:{LIST+4*(k+2+P)}")
        A(f"ds_read_u16_d16_hi {v(vEe+(k+1)%2)}, {v(vL)} offset:{LIST+4*(k+3)+2}")
        for h in range(2):
            A(f"v_pk_fma_f32 {v(vN1+2*h,2)}, {v(m+2*h,2)}, {v(vD+2*h,2)}, {v(vN+2*h,2)}")
        for h in range(2):
            A(f"v_pk_fma_f32 {v(vD+2*h,2)}, {v(vD+2*h,2)}, {v(vEx+2*h,2)}, {v(vD+2*h,2)}")
        for h in range(2):
            A(f"v_pk_fma_f32 {v(vN+2*h,2)}, {v(vN+2*h,2)}, {v(vEx+2*h,2)}, {v(vN1+2*h,2)}")
        c = s(sT0+1) if drain else s(sT0)
        A(f"s_sub_u32 {c}, {c}, 1")
        if k < P-1:
            A("s_cbranch_scc1 L_loop_done" if drain else f"s_cbranch_scc1 L_drain{k+1}")
        else:
            A(f"v_add_u32 {v(vL)}, {4*P}, {v(vL)}")
            A("s_cbranch_scc0 L_drain0" if drain else "s_cbranch_scc0 L_loop")
    assert P % 2 == 0
    A("L_loop:")
    for k in range(P): body(k, False)
    for k in range(P):
        A(f"L_drain{k}:")
        body(k, True)
    A(f"""
    L_loop_done:
    v_rcp_f32 {v(vEx)}, {v(vD)}
    v_rcp_f32 {v(vEx+1)}, {v(vD+1)}
    v_rcp_f32 {v(vEx+2)}, {v(vD+2)}
    v_rcp_f32 {v(vEx+3)}, {v(vD+3)}
    v_pk_add_f32 {v(vD,2)}, {v(vD,2)}, {v(vD+2,2)}
    v_add_f32 v2, |{v(vN)}|, |{v(vN+1)}|
    v_add_f32 v3, |{v(vN+2)}|, |{v(vN+3)}|
    v_pk_mul_f32 {v(vN,2)}, {v(vN,2)}, {v(vEx,2)}
    v_pk_add_f32 v[2:3], v[2:3], {v(vD,2)}
    v_pk_mul_f32 {v(vN+2,2)}, {v(vN+2,2)}, {v(vEx+2,2)}
    v_add_f32 v2, v2, v3
    v_cmp_ngt_f32 vcc, 0x7b800000, v2
    s_waitcnt lgkmcnt(0)
    s_cbranch_vccnz L_safe
    L_silu:
    v_pk_mul_f32 {v(vT,2)}, {v(vN,2)}, {s(sL2E,2)}
    v_pk_mul_f32 {v(vT+2,2)}, {v(vN+2,2)}, {s(sL2E,2)}
    v_exp_f32 {v(vEx)}, {v(vT)}
    v_exp_f32 {v(vEx+1)}, {v(vT+1)}
    v_exp_f32 {v(vEx+2)}, {v(vT+2)}
    v_exp_f32 {v(vEx+3)}, {v(vT+3)}
    v_pk_add_f32 {v(vEx,2)}, {v(vEx,2)}, 1.0 op_sel_hi:[1,0]
    v_pk_add_f32 {v(vEx+2,2)}, {v(vEx+2,2)}, 1.0 op_sel_hi:[1,0]
    v_rcp_f32 {v(vEx)}, {v(vEx)}
    v_rcp_f32 {v(vEx+1)}, {v(vEx+1)}
    v_rcp_f32 {v(vEx+2)}, {v(vEx+2)}
    v_rcp_f32 {v(vEx+3)}, {v(vEx+3)}
    v_pk_mul_f32 {v(vN,2)}, {v(vN,2)}, {v(vEx,2)}
    v_pk_mul_f32 {v(vN+2,2)}, {v(vN+2,2)}, {v(vEx+2,2)}
    v_cvt_pk_bf16_f32 {v(vN1)}, {v(vN)}, {v(vN+1)}
    v_cvt_pk_bf16_f32 {v(vN1+1)}, {v(vN+2)}, {v(vN+3)}
    s_sub_u32 {s(sT0)}, {s(sBA)}, 12
    buffer_store_dwordx2 {v(vN1,2)}, {v(vO)}, {s(sOUT,4)}, {s(sOO)} offen {OUTSC}
    s_add_u32 {s(sBA)}, {s(sBA)}, 4
    s_cmp_lt_u32 {s(sT0)}, 4
    s_cbranch_scc0 L_fin
    s_waitcnt vmcnt(1)
    s_branch L_batch
    L_fin:
    """)
    if DIAG:
        stamp(7)
        A("s_waitcnt vmcnt(0)")
        stamp(8)
        dump_stamps()
    A("L_end:")
    A("s_endpgm")
    A("L_code_end:")
    A(f"""
    L_slotretry:
    buffer_load_dwordx4 v[8:11], {v(vSl)}, {s(sWS,4)}, {s(sT0)} offen sc1
    s_add_u32 {s(sT0+15)}, {s(sT0+15)}, 1
    s_cmp_lt_u32 {s(sT0+15)}, {SPIN}
    s_cbranch_scc1 L_slotchk
    s_waitcnt vmcnt(0)
    v_mov_b32 v11, -1
    s_branch L_slotok
    """)
    def safe_step():
        d = vDAT
        A(f"buffer_load_dwordx4 {v(d,4)}, {v(vP0,2)}, {s(sTAB,4)}, 0 idxen offen sc1")
        T(0)
        A(f"""
        s_waitcnt vmcnt(0)
        v_lshlrev_b32 {v(vN1)}, 16, {v(d)}
        v_and_b32 {v(vN1+1)}, 0xffff0000, {v(d)}
        v_lshlrev_b32 {v(vN1+2)}, 16, {v(d+1)}
        v_and_b32 {v(vN1+3)}, 0xffff0000, {v(d+1)}
        v_pk_add_f32 {v(vT,2)}, {v(vT,2)}, {v(vN1,2)}
        v_pk_add_f32 {v(vT+2,2)}, {v(vT+2,2)}, {v(vN1+2,2)}
        v_lshlrev_b32 {v(vN1)}, 16, {v(d+2)}
        v_and_b32 {v(vN1+1)}, 0xffff0000, {v(d+2)}
        v_lshlrev_b32 {v(vN1+2)}, 16, {v(d+3)}
        v_and_b32 {v(vN1+3)}, 0xffff0000, {v(d+3)}
        """)
        for k in range(4): A(f"v_exp_f32 {v(vEx+k)}, {v(vT+k)}")
        A(f"v_pk_add_f32 {v(vEx,2)}, {v(vEx,2)}, 1.0 op_sel_hi:[1,0]")
        A(f"v_pk_add_f32 {v(vEx+2,2)}, {v(vEx+2,2)}, 1.0 op_sel_hi:[1,0]")
        for k in range(4): A(f"v_rcp_f32 {v(vEx+k)}, {v(vEx+k)}")
        A(f"v_pk_fma_f32 {v(vN,2)}, {v(vN1,2)}, {v(vEx,2)}, {v(vN,2)}")
        A(f"v_pk_fma_f32 {v(vN+2,2)}, {v(vN1+2,2)}, {v(vEx+2,2)}, {v(vN+2,2)}")
    A(f"""
    L_safe:
    v_mul_u32_u24 {v(vL)}, {LSTR}, v31
    v_mul_u32_u24 v2, {XAS}, v31
    s_mov_b32 {s(sT0)}, {XAU}
    v_add3_u32 v2, v2, {v(vP0+1)}, {s(sT0)}
    ds_read_b128 {v(vN,4)}, v2 offset:256
    s_mov_b32 {s(sT0)}, {s(sTR)}
    L_safe_loop:
    ds_read_b32 v2, {v(vL)} offset:{LIST}
    v_add_u32 {v(vL)}, 4, {v(vL)}
    s_waitcnt lgkmcnt(0)
    v_and_b32 {v(vP0)}, 0xffff, v2
    v_and_b32 {v(vEe)}, 0xffff0000, v2
    """)
    safe_step()
    A(f"""
    s_sub_u32 {s(sT0)}, {s(sT0)}, 1
    s_cmp_lg_u32 {s(sT0)}, 0
    s_cbranch_scc1 L_safe_loop
    s_branch L_silu
    L_scan:
    s_waitcnt lgkmcnt(0)
    v_lshlrev_b32 v60, 7, v31
    v_add_u32 v60, {s(sB)}, v60
    v_lshlrev_b32 v56, 2, v1
    v_lshlrev_b32 v57, 1, v1
    s_mov_b32 {s(sT0)}, 0
    L_scan_outer:
    global_load_dword v58, v56, {s(sDST,2)}
    global_load_dword v59, v56, {s(sSRC,2)}
    global_load_ushort v61, v57, {s(sE,2)}
    v_add_u32 v56, 256, v56
    v_add_u32 v57, 128, v57
    s_waitcnt vmcnt(0)
    v_and_b32 v2, 127, v58
    v_cmp_eq_u32 {s(sM,2)}, {s(sB)}, v2
    v_lshlrev_b32 v61, 16, v61
    L_scan_inner:
    s_cmp_eq_u64 {s(sM,2)}, 0
    s_cbranch_scc1 L_scan_next
    s_ff1_i32_b64 {s(sT0+1)}, {s(sM,2)}
    s_bitset0_b64 {s(sM,2)}, {s(sT0+1)}
    v_readlane_b32 {s(sT0+2)}, v58, {s(sT0+1)}
    v_readlane_b32 {s(sT0+3)}, v59, {s(sT0+1)}
    v_readlane_b32 {s(sT0+14)}, v61, {s(sT0+1)}
    s_nop 1
    v_cmp_eq_u32 vcc, {s(sT0+2)}, v60
    s_and_b64 exec, vcc, vcc
    s_cbranch_scc0 L_scan_skip
    v_mov_b32 {v(vP0)}, {s(sT0+3)}
    v_mov_b32 {v(vEe)}, {s(sT0+14)}
    """)
    safe_step()
    A(f"""
    L_scan_skip:
    s_mov_b64 exec, -1
    s_branch L_scan_inner
    L_scan_next:
    s_add_u32 {s(sT0)}, {s(sT0)}, 1
    s_cmp_lt_u32 {s(sT0)}, {E//64}
    s_cbranch_scc1 L_scan_outer
    s_branch L_silu
    """)

A('.amdgcn_target "amdgcn-amd-amdhsa--gfx950"')
A(".text")
A(f".globl {NAME}_kernel")
A(f".type {NAME}_kernel,@function")
kernel()
A('.section .rodata,"a"')
A(".p2align 6")
A(f".amdhsa_kernel {NAME}_kernel")
A(""".amdhsa_next_free_vgpr 120
.amdhsa_next_free_sgpr 102
.amdhsa_accum_offset 120
.amdhsa_group_segment_fixed_size 0
.amdhsa_kernarg_size 80
.amdhsa_user_sgpr_count 2
.amdhsa_user_sgpr_kernarg_segment_ptr 1
.amdhsa_system_sgpr_workgroup_id_x 1
.end_amdhsa_kernel""")
head = open("cdna_kernels/" + NAME + ".s.ref").read().split("\n")
head = [l for l in head if l.startswith(";") and "@launch" not in l and "launch geometry" not in l and "grid=ceil" not in l]
head.append(f"; @launch grid=(256,1,1) block=(1024,1,1) lds={LDSZ}")
open(sys.argv[1], "w").write("\n".join(head) + "\n" + A.text())
```

```python
import sys
from asmlib import Asm, v, s

NAME = "gather_scatter__edge_featured_mpnn_egc__graph"
N, E = 10000, 160000
SLICE = 10240 * 256
SLOT0 = 0x500000
FLAG0 = 0x700000
EPOCH = 0x710000
WS_USED = EPOCH + 256
STAMP0 = 0x800000
SCAP = 48
NCAP = 48
LSTR = 196
ISTR = 392
NLOG2E = 0xBFB8AA3B

opts = dict(a.split("=") for a in sys.argv[2:])
DIAG = int(opts.get("diag", 0))
P = int(opts.get("P", 8))
NPF = int(opts.get("npf", 0))
PRIO = int(opts.get("prio", 1))
CPF = int(opts.get("cpf", 1))
OUTSC = opts.get("outsc", "sc1")
GSC = opts.get("gsc", "sc1")
SPIN = 30000
WSOFF = int(opts.get("wsoff", 0)) << 20
TOUCH = int(opts.get("touch", 0))

CNT2, HIST, ORDER, FLAG = 64, 512, 768, 1088
LIST = 1280
WB = LIST + 16384
WV, WA, WU = WB + 16384, WB + 32768, WB + 49152
XL = WB + 65536
IMG = XL + 20480
XAS = 528
XAU = IMG + 16384
LDSZ = 163840
CBASE = LDSZ - 512
assert XAU + 80*XAS <= CBASE + 384

A = Asm()
sX, sE, sSRC, sDST, sU, sV, sG, sOUTP = 4, 6, 8, 10, 12, 14, 16, 18
sWS, sTAB, sOUT = 20, 24, 28
sW, sJ, sF, sB, sC, sQB, sTAG = 32, 33, 34, 35, 36, 37, 38
sL2E = 40
sT0 = 44
sM = 60
sST = 80

nst = [0]
def stamp(k):
    if DIAG:
        A(f"s_memrealtime {s(sST+2*k,2)}")
        A("s_waitcnt lgkmcnt(0)")

def dump_stamps():
    if DIAG:
        A("s_mov_b64 exec, 1")
        A(f"s_lshl_b32 {s(sT0)}, s2, 4")
        A(f"s_add_u32 {s(sT0)}, {s(sT0)}, {s(sW)}")
        A(f"s_lshl_b32 {s(sT0)}, {s(sT0)}, 6")
        A(f"s_add_u32 {s(sT0)}, {s(sT0)}, {STAMP0}")
        A("v_mov_b32 v1, 0")
        for k in range(10):
            A(f"v_mov_b32 v2, {s(sST+2*k)}")
            A(f"buffer_store_dword v2, v1, {s(sWS,4)}, {s(sT0)} offen offset:{4*k}")

WF, XF, AC = 8, 40, 88
vXa, vWa, vSo, vXo, vCraw, vTagB = 4, 112, 113, 114, 116, 118
vDum = 119

def kernel():
    A(".p2align 8")
    A(f"{NAME}_kernel:")
    A(f"""
    s_cmp_ge_u32 s2, 256
    s_cbranch_scc1 L_end
    """)
    if DIAG:
        for k in range(10):
            A(f"s_mov_b64 {s(sST+2*k,2)}, 0")
        A(f"s_memrealtime {s(sST,2)}")
    A(f"""
    s_load_dwordx16 s[4:19], s[0:1], 0
    s_load_dwordx2 {s(sWS,2)}, s[0:1], 72
    v_lshrrev_b32 v1, 6, v0
    v_lshlrev_b32 v2, 4, v0
    v_readfirstlane_b32 {s(sW)}, v1
    s_lshr_b32 {s(sJ)}, s2, 3
    s_and_b32 {s(sT0)}, s2, 7
    s_lshr_b32 {s(sC)}, s2, 5
    """)
    if CPF:
        A(f"""
        s_cmp_lg_u32 {s(sW)}, 0
        s_cbranch_scc1 L_nocpf
        s_getpc_b64 {s(sT0+2,2)}
        v_lshlrev_b32 v3, 7, v0
        v_min_u32 v3, L_code_end-L_nocpf, v3
        global_load_dword {v(vDum)}, v3, {s(sT0+2,2)}
        L_nocpf:
        """)
    A(f"""
    s_lshl3_add_u32 {s(sC)}, {s(sT0)}, {s(sC)}
    s_mul_i32 {s(sT0+1)}, {s(sC)}, 10000
    v_mov_b32 v8, -1
    v_mov_b32 v9, -1
    v_mov_b64 v[10:11], v[8:9]
    v_add_u32 v12, {IMG}, v2
    ds_write_b128 v12, v[8:11]
    v_add_u32 v2, {s(sT0+1)}, v2
    v_lshrrev_b32 v3, 1, v2
    s_and_b32 {s(sF)}, s2, 1
    s_bfe_u32 {s(sB)}, s2, 0x20001
    s_lshl_b32 {s(sB)}, {s(sB)}, 5
    s_add_u32 {s(sB)}, {s(sB)}, {s(sJ)}
    v_lshrrev_b32 v5, 3, v0
    v_lshrrev_b32 v6, 4, v0
    v_and_b32 v4, 2, v5
    v_and_or_b32 v4, v6, 4, v4
    v_xor_b32 v4, v4, v0
    v_and_b32 v4, 7, v4
    s_lshl_b32 {s(sT0+4)}, {s(sF)}, 7
    v_lshl_or_b32 v4, v4, 4, {s(sT0+4)}
    v_lshl_or_b32 v4, v5, 8, v4
    v_add_u32 v7, 32768, v4
    v_xor_b32 v5, v6, v0
    v_and_b32 v5, 15, v5
    s_lshl_b32 {s(sT0+5)}, {s(sB)}, 8
    v_lshl_or_b32 v5, v5, 4, {s(sT0+5)}
    v_lshl_or_b32 v5, v6, 15, v5
    s_lshl_b32 {s(sT0+6)}, {s(sW)}, 10
    v_cmp_gt_u32 vcc, 625, v0
    s_add_u32 m0, {s(sT0+6)}, {WB}
    s_cmp_ge_u32 {s(sW)}, 10
    s_cbranch_scc1 L_noedge
    s_mov_b64 exec, vcc
    s_waitcnt lgkmcnt(0)
    global_load_dwordx4 v[8:11], v2, {s(sDST,2)}
    global_load_dwordx4 v[12:15], v2, {s(sSRC,2)}
    global_load_dwordx2 v[16:17], v3, {s(sE,2)}
    s_mov_b64 exec, -1
    s_branch L_dma
    L_noedge:
    v_and_b32 v1, 31, v0
    v_mul_u32_u24 v12, {ISTR}, v1
    v_add_u32 v12, {IMG}, v12
    v_lshlrev_b32 v13, 2, v1
    v_add_u32 v13, {CBASE}, v13
    ds_write_b32 v13, v12 offset:384
    s_waitcnt lgkmcnt(0)
    s_cmp_lt_u32 {s(sW)}, 12
    s_cbranch_scc1 L_dma
    v_add_u32 v6, {16*32768}, v5
    v_min_u32 v6, {N*256-16}, v6
    s_add_u32 m0, {s(sT0+6)}, {XL+4096}
    s_nop 0
    global_load_lds_dwordx4 v6, {s(sX,2)}
    s_add_u32 m0, {s(sT0+6)}, {WB}
    s_nop 0
    L_dma:
    s_add_u32 {s(sWS)}, {s(sWS)}, {WSOFF}
    s_addc_u32 {s(sWS+1)}, {s(sWS+1)}, 0
    global_load_lds_dwordx4 v7, {s(sG,2)}
    s_add_u32 m0, {s(sT0+6)}, {WV}
    s_mov_b64 {s(sM+8,2)}, vcc
    global_load_lds_dwordx4 v4, {s(sV,2)}
    s_add_u32 m0, {s(sT0+6)}, {XL}
    s_add_u32 {s(sT0+2)}, {s(sWS)}, {EPOCH}
    global_load_lds_dwordx4 v5, {s(sX,2)}
    s_addc_u32 {s(sT0+3)}, {s(sWS+1)}, 0
    s_load_dword {s(sTAG)}, {s(sT0+2,2)}, 0
    s_add_u32 m0, {s(sT0+6)}, {WA}
    s_barrier
    global_load_lds_dwordx4 v4, {s(sG,2)}
    s_add_u32 m0, {s(sT0+6)}, {WU}
    v_and_b32 v1, 63, v0
    global_load_lds_dwordx4 v4, {s(sU,2)}
    """)
    stamp(1)
    A(f"""
    v_and_b32 v2, 15, v0
    s_add_u32 {s(sT0+7)}, {s(sT0+4)}, 65536
    v_lshl_add_u32 v3, v2, 3, {s(sT0+7)}
    global_load_dwordx2 {v(vCraw,2)}, v3, {s(sG,2)}
    s_mov_b32 {s(sWS+2)}, {STAMP0 + 0x100000 if DIAG else WS_USED}
    s_mov_b32 {s(sWS+3)}, 0x20000
    s_mov_b32 {s(sL2E)}, {NLOG2E}
    s_mov_b32 {s(sL2E+1)}, {NLOG2E}
    s_and_b32 {s(sQB)}, {s(sJ)}, 3
    s_mul_i32 {s(sT0+8)}, {s(sF)}, {SLICE}
    v_mov_b32 {v(vSo)}, 0
    s_cmp_ge_u32 {s(sW)}, 8
    s_cbranch_scc1 L_nogsetup
    """)
    A(f"""
    s_lshr_b32 {s(sT0)}, {s(sW)}, 2
    s_mul_i32 {s(sT0)}, {s(sT0)}, 3
    s_and_b32 {s(sT0+1)}, {s(sW)}, 3
    s_lshl_b32 {s(sT0+2)}, {s(sT0)}, 12
    s_add_u32 {s(sT0+2)}, {s(sT0+2)}, {XL}
    v_lshrrev_b32 v3, 4, v1
    v_xor_b32 {v(vXa)}, v2, v3
    v_lshlrev_b32 {v(vXa)}, 4, {v(vXa)}
    v_lshl_or_b32 {v(vXa)}, v2, 8, {v(vXa)}
    v_add_u32 {v(vXa)}, {s(sT0+2)}, {v(vXa)}
    v_xor_b32 {v(vXa+1)}, 64, {v(vXa)}
    v_xor_b32 {v(vXa+2)}, 128, {v(vXa)}
    v_xor_b32 {v(vXa+3)}, 192, {v(vXa)}
    v_bfe_u32 {v(vSo)}, v1, 3, 2
    v_xor_b32 {v(vSo)}, {s(sT0+1)}, {v(vSo)}
    v_and_b32 {v(vWa)}, 3, v1
    v_lshlrev_b32 {v(vWa)}, 3, {v(vWa)}
    v_lshl_or_b32 {v(vWa)}, {v(vSo)}, 5, {v(vWa)}
    v_bfe_u32 {v(vSo)}, v1, 2, 2
    v_lshl_or_b32 {v(vWa)}, {v(vSo)}, 7, {v(vWa)}
    v_lshl_or_b32 {v(vWa)}, v3, 10, {v(vWa)}
    v_add_u32 {v(vWa)}, {WB}, {v(vWa)}
    v_lshlrev_b32 v3, 4, v3
    v_lshl_or_b32 {v(vSo)}, v2, 15, v3
    s_lshl_b32 {s(sT0+1)}, {s(sT0+1)}, 6
    s_mul_i32 {s(sT0+2)}, {s(sT0)}, {16*XAS}
    s_add_u32 {s(sT0+2)}, {s(sT0+2)}, {s(sT0+1)}
    s_add_u32 {s(sT0+2)}, {s(sT0+2)}, {XAU}
    v_mul_u32_u24 {v(vXo)}, {XAS}, v2
    v_add3_u32 {v(vXo)}, {v(vXo)}, v3, {s(sT0+2)}
    s_lshl_b32 {s(sT0)}, {s(sT0)}, 19
    s_add_u32 {s(sT0+9)}, {s(sT0+8)}, {s(sT0+5)}
    s_add_u32 {s(sT0+9)}, {s(sT0+9)}, {s(sT0+1)}
    s_add_u32 {s(sT0+9)}, {s(sT0+9)}, {s(sT0)}
    L_nogsetup:
    s_cmp_ge_u32 {s(sW)}, 10
    s_cbranch_scc1 {"L_touch" if TOUCH else "L_b1"}
    """)
    assert XL % 256 == 0
    A(f"""
    s_mul_i32 {s(sT0)}, {s(sQB)}, -128
    s_movk_i32 {s(sT0+1)}, 0x1fc
    s_mov_b32 {s(sT0+2)}, 0xffff0000
    v_mov_b32 v18, 8
    v_mov_b32 v19, {CBASE}
    s_mov_b64 exec, {s(sM+8,2)}
    s_waitcnt vmcnt(8)
    """)
    for i in range(4):
        A(f"""
        v_lshl_add_u32 {v(20+i)}, {v(8+i)}, 2, {s(sT0)}
        v_and_or_b32 {v(20+i)}, {v(20+i)}, {s(sT0+1)}, v19
        ds_add_rtn_u32 {v(20+i)}, {v(20+i)}, v18 offset:384
        """)
    A(f"""
    s_waitcnt vmcnt(6)
    v_lshl_or_b32 v12, v16, 16, v12
    v_and_or_b32 v13, v16, {s(sT0+2)}, v13
    v_lshl_or_b32 v14, v17, 16, v14
    v_and_or_b32 v15, v17, {s(sT0+2)}, v15
    s_waitcnt lgkmcnt(0)
    """)
    for i in range(4):
        A(f"ds_write2_b32 {v(20+i)}, {v(12+i)}, {v(8+i)} offset0:0 offset1:1")
    A(f"""
    s_mov_b64 exec, -1
    """)
    if TOUCH:
        A(f"""
        s_branch L_b1
        L_touch:
        s_waitcnt vmcnt(3)
        s_cmp_ge_u32 {s(sW)}, 13
        s_cbranch_scc1 L_b1
        v_subrev_u32 v3, 640, v0
        v_lshlrev_b32 v3, 15, v3
        s_add_u32 {s(sT0)}, {s(sT0+8)}, {s(sT0+5)}
        s_cmp_lt_u32 {s(sW)}, 12
        s_cbranch_scc1 L_touch2
        v_and_b32 v3, 31, v1
        v_lshlrev_b32 v3, 14, v3
        s_lshl_b32 {s(sT0)}, {s(sQB)}, 19
        s_lshl_b32 {s(sT0+1)}, {s(sC)}, 8
        s_add_u32 {s(sT0)}, {s(sT0)}, {s(sT0+1)}
        s_add_u32 {s(sT0)}, {s(sT0)}, {SLOT0}
        L_touch2:
        v_min_u32 v3, {79*32768}, v3
        buffer_load_dword {v(vDum)}, v3, {s(sWS,4)}, {s(sT0)} offen sc1
        """)
    A(f"""
    L_b1:
    s_waitcnt vmcnt(3) lgkmcnt(0)
    s_barrier
    """)
    stamp(2)
    A(f"""
    s_cmp_ge_u32 {s(sW)}, 8
    s_cbranch_scc1 L_rwave
    """)
    def rdW(st, base):
        for m in range(2):
            for hh in range(2):
                A(f"ds_read_b64_tr_b16 {v(WF+16*m+4*st+2*hh,2)}, {v(vWa)} offset:{base+m*16384+st*4096+hh*512}")
    def rdX(t, st):
        A(f"ds_read_b128 {v(XF+16*t+4*st,4)}, {v(vXa+st)} offset:{t*4096}")
    def mm1(t, st, m):
        acc = v(AC+8*t+4*m, 4)
        A(f"v_mfma_f32_16x16x32_bf16 {acc}, {v(WF+16*m+4*st,4)}, {v(XF+16*t+4*st,4)}, {acc if st else 0}")
    def mm(t, st):
        mm1(t, st, 0); mm1(t, st, 1)
    def epi1_ops(t):
        a = AC + 8*t
        ops = [f"v_mul_f32 {v(a+k)}, {s(sL2E)}, {v(a+k)}" for k in range(4)]
        ops += [f"v_cvt_pk_bf16_f32 {v(a+k)}, {v(a+2*k)}, {v(a+2*k+1)}" for k in range(4)]
        ops += [f"buffer_store_dwordx4 {v(a,4)}, {v(vSo)}, {s(sWS,4)}, {s(sT0+9)} offen sc1", f"s_add_u32 {s(sT0+9)}, {s(sT0+9)}, {16*32768}"]
        return ops
    def epi2_ops(t):
        a = AC + 8*t
        ops = [f"v_mul_f32 {v(a+k)}, {s(sL2E)}, {v(a+k)}" for k in range(4)]
        ops += [f"ds_write_b128 {v(vXo)}, {v(a+4,4)} offset:{t*16*XAS+256}", f"ds_write_b128 {v(vXo)}, {v(a,4)} offset:{t*16*XAS}"]
        return ops
    def tiles12(epi, tag):
        for st in range(4): mm(1, st)
        A(f"s_cbranch_scc1 L_two_{tag}")
        e0 = epi(0)
        k = 0
        for st in range(4):
            for m in range(2):
                mm1(2, st, m)
                for o in e0[k:k+2]: A(o)
                k += 2
        for o in epi(1): A(o)
        if tag == "g2": A("s_nop 0")
        for o in epi(2): A(o)
        A(f"s_branch L_done_{tag}")
        A(f"L_two_{tag}:")
        for o in epi(0): A(o)
        A("s_nop 1")
        for o in epi(1): A(o)
        A(f"L_done_{tag}:")
    for st in range(3):
        rdW(st, 0); rdX(0, st)
    A("s_waitcnt lgkmcnt(10)"); mm(0, 0)
    rdW(3, 0); rdX(0, 3)
    A("s_waitcnt lgkmcnt(10)"); mm(0, 1)
    for st in range(4): rdX(1, st)
    A("s_waitcnt lgkmcnt(9)"); mm(0, 2)
    for st in range(4): rdX(2, st)
    A("s_waitcnt lgkmcnt(8)"); mm(0, 3)
    A(f"s_cmp_ge_u32 {s(sW)}, 4")
    A("s_waitcnt vmcnt(0) lgkmcnt(0)")
    tiles12(epi1_ops, "g1")
    stamp(3)
    A("s_barrier")
    for st in range(3): rdW(st, 32768)
    A("s_waitcnt lgkmcnt(8)"); mm(0, 0)
    rdW(3, 32768)
    A("s_waitcnt lgkmcnt(8)"); mm(0, 1)
    A("s_waitcnt lgkmcnt(4)"); mm(0, 2)
    A(f"s_cmp_ge_u32 {s(sW)}, 4")
    A("s_waitcnt lgkmcnt(0)"); mm(0, 3)
    tiles12(epi2_ops, "g2")
    A("s_branch L_pre3")
    A(f"""
    L_rwave:
    v_subrev_u32 v3, 512, v0
    v_lshrrev_b32 v4, 4, v3
    v_mul_u32_u24 v5, {ISTR}, v4
    v_lshl_add_u32 v5, v2, 3, v5
    v_add_u32 v5, {IMG}, v5
    ds_read2_b32 v[8:9], v5 offset0:0 offset1:32
    ds_read2_b32 v[10:11], v5 offset0:64 offset1:65
    ds_read2_b32 v[12:13], v5 offset0:1 offset1:33
    v_and_b32 v6, 31, v0
    v_lshlrev_b32 v7, 2, v6
    v_add_u32 v7, {CBASE}, v7
    ds_read_b32 v14, v7 offset:384
    v_mul_u32_u24 v6, {ISTR}, v6
    v_add_u32 v6, {IMG + 8*SCAP}, v6
    v_mad_u32_u24 {v(vTagB)}, v2, 37, {s(sTAG)}
    v_lshlrev_b32 v15, 24, {v(vTagB)}
    v_lshlrev_b32 v16, 4, v2
    v_lshl_or_b32 v16, v4, 14, v16
    s_lshl_b32 {s(sT0)}, {s(sQB)}, 19
    s_lshl_b32 {s(sT0+1)}, {s(sC)}, 8
    s_add_u32 {s(sT0)}, {s(sT0)}, {s(sT0+1)}
    s_add_u32 {s(sT0)}, {s(sT0)}, {SLOT0}
    s_waitcnt lgkmcnt(0)
    v_cmp_gt_u32 vcc, v14, v6
    v_bfe_u32 v12, v12, 7, 8
    v_bfe_u32 v13, v13, 7, 8
    v_bfe_u32 v11, v11, 7, 8
    v_lshl_or_b32 v12, v13, 8, v12
    v_lshl_or_b32 v11, v11, 16, v12
    s_cbranch_vccz L_noovf
    v_mov_b32 v11, 0xfefefe
    L_noovf:
    v_or_b32 v11, v11, v15
    s_waitcnt vmcnt(0)
    buffer_store_dwordx4 v[8:11], v16, {s(sWS,4)}, {s(sT0)} offen sc1
    v_mov_b32 v20, 0xffff
    v_mov_b32 v21, v20
    v_mov_b64 v[22:23], v[20:21]
    v_lshlrev_b32 v4, 4, v3
    ds_write_b128 v4, v[20:23] offset:{LIST}
    ds_write_b128 v4, v[20:23] offset:{LIST+8192}
    v_mul_u32_u24 v5, {LSTR}, v3
    v_add_u32 v5, {LIST}, v5
    v_cmp_gt_u32 vcc, 112, v3
    v_lshlrev_b32 v4, 2, v3
    v_mov_b32 v6, 304
    v_cndmask_b32 v5, 0, v5, vcc
    v_cmp_gt_u32 vcc, v6, v3
    s_and_b64 exec, vcc, vcc
    ds_write_b32 v4, v5 offset:{CNT2}
    s_mov_b64 exec, -1
    """)
    stamp(3)
    A(f"""
    s_barrier
    L_pre3:
    """)
    vSl, vFl = 24, 25
    A(f"""
    v_mad_u32_u24 {v(vTagB)}, v2, 37, {s(sTAG)}
    v_and_b32 {v(vTagB)}, 0xff, {v(vTagB)}
    s_add_u32 {s(sTAG)}, {s(sTAG)}, 1
    v_lshlrev_b32 {v(vSl)}, 4, v0
    s_lshl_b32 {s(sT0)}, {s(sB)}, 14
    s_add_u32 {s(sT0)}, {s(sT0)}, {SLOT0}
    v_lshlrev_b32 {v(vFl)}, 10, v1
    v_mov_b32 v26, {s(sTAG)}
    s_lshl_b32 {s(sT0+1)}, s2, 2
    s_add_u32 {s(sT0+1)}, {s(sT0+1)}, {FLAG0}
    s_mov_b32 {s(sT0+3)}, 0
    s_mov_b32 {s(sT0+15)}, 0
    s_cmp_lg_u32 {s(sW)}, 0
    s_waitcnt vmcnt(0) lgkmcnt(0)
    s_barrier
    s_cbranch_scc1 L_slot
    s_mov_b64 exec, 0xff
    buffer_store_dword v26, {v(vFl)}, {s(sWS,4)}, {s(sT0+1)} offen sc1
    s_mov_b64 exec, -1
    L_slot:
    buffer_load_dwordx4 v[8:11], {v(vSl)}, {s(sWS,4)}, {s(sT0)} offen sc1
    """)
    stamp(4)
    vC, vXA, vN, vD, vI, vP0, vEe, vL, vO = 4, 8, 12, 16, 20, 22, 26, 28, 29
    vT, vMm, vEx, vN1, vDAT = 32, 40, 48, 52, 64
    sBA, sTR, sFL, sOO = sT0+10, sT0+11, sT0+12, sT0+13
    A(f"""
    v_lshlrev_b32 {v(vC)}, 16, {v(vCraw)}
    v_and_b32 {v(vC+1)}, 0xffff0000, {v(vCraw)}
    v_lshlrev_b32 {v(vC+2)}, 16, {v(vCraw+1)}
    v_and_b32 {v(vC+3)}, 0xffff0000, {v(vCraw+1)}
    v_pk_mul_f32 {v(vC,2)}, {v(vC,2)}, {s(sL2E,2)}
    v_pk_mul_f32 {v(vC+2,2)}, {v(vC+2,2)}, {s(sL2E,2)}
    v_and_b32 v30, 1, v1
    v_lshlrev_b32 v30, 4, v30
    v_mov_b32 v3, 0x3f80
    v_lshlrev_b32 v3, v30, v3
    v_and_b32 v30, 2, v1
    v_cmp_eq_u32 vcc, 0, v30
    v_lshlrev_b32 {v(vP0+1)}, 4, v2
    v_lshrrev_b32 v30, 4, v1
    v_cndmask_b32 {v(vI)}, 0, v3, vcc
    v_sub_u32 {v(vI+1)}, v3, {v(vI)}
    v_lshlrev_b32 v30, 2, v30
    s_xor_b32 {s(sT0+2)}, {s(sW)}, 3
    s_bitcmp1_b32 {s(sW)}, 2
    s_cselect_b32 {s(sBA)}, {s(sT0+2)}, {s(sW)}
    s_add_u32 {s(sOO)}, {s(sT0+5)}, {s(sT0+4)}
    s_add_u32 {s(sTAB)}, {s(sWS)}, {s(sT0+8)}
    s_addc_u32 {s(sTAB+1)}, {s(sWS+1)}, 0x1000000
    s_mov_b32 {s(sTAB+2)}, {N}
    s_mov_b32 {s(sTAB+3)}, 0x20000
    s_mov_b64 {s(sOUT,2)}, {s(sOUTP,2)}
    s_mov_b32 {s(sOUT+2)}, {N*256}
    s_mov_b32 {s(sOUT+3)}, 0x20000
    v_mov_b32 v12, 4
    v_mov_b32 v13, 2
    s_movk_i32 {s(sT0+2)}, 0xfe
    L_slotchk:
    s_waitcnt vmcnt(0)
    v_cmp_ne_u32_sdwa vcc, {v(vTagB)}, v11 src0_sel:DWORD src1_sel:BYTE_3
    s_cbranch_vccnz L_slotretry
    L_slotok:
    """)
    for p in range(3):
        A(f"v_cmp_gt_u32_sdwa {s(sM+2*p,2)}, {s(sT0+2)}, v11 src0_sel:DWORD src1_sel:BYTE_{p}")
        A(f"v_lshlrev_b32_sdwa {v(14+p)}, v13, v11 dst_sel:DWORD dst_unused:UNUSED_PAD src0_sel:DWORD src1_sel:BYTE_{p}")
        A(f"s_mov_b64 exec, {s(sM+2*p,2)}")
        A(f"ds_add_rtn_u32 {v(14+p)}, {v(14+p)}, v12 offset:{CNT2}")
        A("s_mov_b64 exec, -1")
    A(f"v_cmp_eq_u32_sdwa vcc, {s(sT0+2)}, v11 src0_sel:DWORD src1_sel:BYTE_0")
    A(f"""
    s_cmp_lg_u32 {s(sW)}, 15
    s_cbranch_scc1 L_nopoll0
    s_and_b32 {s(sT0+1)}, s2, 7
    s_lshl_b32 {s(sT0+1)}, {s(sT0+1)}, 10
    s_add_u32 {s(sT0+1)}, {s(sT0+1)}, {FLAG0}
    v_lshlrev_b32 {v(vFl)}, 4, v1
    buffer_load_dwordx4 v[56:59], {v(vFl)}, {s(sWS,4)}, {s(sT0+1)} offen sc1
    L_nopoll0:
    """)
    A("s_waitcnt lgkmcnt(0)")
    for p in range(3):
        A(f"s_mov_b64 exec, {s(sM+2*p,2)}")
        A(f"ds_write_b32 {v(14+p)}, {v(8+p)}")
    A(f"""
    s_mov_b64 exec, vcc
    v_mov_b32 v14, 0
    ds_write_b32 v14, v12 offset:{FLAG}
    s_mov_b64 exec, -1
    s_cmp_lg_u32 {s(sW)}, 0
    s_waitcnt lgkmcnt(0)
    s_barrier
    """)
    stamp(5)
    if DIAG: A(f"s_cmp_lg_u32 {s(sW)}, 0")
    A(f"""
    s_cbranch_scc1 L_nosort
    v_lshlrev_b32 v2, 2, v1
    ds_read_b32 v8, v2 offset:{CNT2}
    ds_read_b32 v9, v2 offset:{CNT2+256}
    v_mul_u32_u24 v10, {LSTR}, v1
    v_add_u32 v10, {LIST+252}, v10
    v_add_u32 v11, {64*LSTR}, v10
    v_mov_b32 v24, 1
    s_waitcnt lgkmcnt(0)
    v_sub_u32 v12, v10, v8
    v_sub_u32 v13, v11, v9
    v_max_i32 v12, 0, v12
    v_max_i32 v13, 0, v13
    ds_add_rtn_u32 v16, v12, v24 offset:{HIST}
    s_mov_b64 exec, 0xffff
    ds_add_rtn_u32 v17, v13, v24 offset:{HIST}
    v_lshl_or_b32 v9, v13, 8, v1
    v_add_u32 v9, 64, v9
    s_mov_b64 exec, -1
    ds_read_b32 v19, v2 offset:{HIST}
    v_lshl_or_b32 v8, v12, 8, v1
    s_waitcnt lgkmcnt(0)
    v_add_u32_dpp v18, v19, v19 row_shr:1 row_mask:0xf bank_mask:0xf bound_ctrl:1
    s_nop 1
    v_add_u32_dpp v18, v18, v18 row_shr:2 row_mask:0xf bank_mask:0xf bound_ctrl:1
    s_nop 1
    v_add_u32_dpp v18, v18, v18 row_shr:4 row_mask:0xf bank_mask:0xf bound_ctrl:1
    s_nop 1
    v_add_u32_dpp v18, v18, v18 row_shr:8 row_mask:0xf bank_mask:0xf bound_ctrl:1
    s_nop 1
    v_add_u32_dpp v18, v18, v18 row_bcast:15 row_mask:0xa bank_mask:0xf
    s_nop 1
    v_add_u32_dpp v18, v18, v18 row_bcast:31 row_mask:0xc bank_mask:0xf
    v_sub_u32 v18, v18, v19
    ds_bpermute_b32 v12, v12, v18
    ds_bpermute_b32 v13, v13, v18
    s_waitcnt lgkmcnt(0)
    v_add_lshl_u32 v12, v12, v16, 2
    v_add_lshl_u32 v13, v13, v17, 2
    ds_write_b32 v12, v8 offset:{ORDER}
    s_mov_b64 exec, 0xffff
    ds_write_b32 v13, v9 offset:{ORDER}
    s_mov_b64 exec, -1
    s_branch L_b5
    L_nosort:
    """)
    if NPF:
        A(f"""
        s_cmp_eq_u32 {s(sW)}, 15
        s_cbranch_scc1 L_nopf
        s_lshl4_add_u32 {s(sT0+2)}, {s(sJ)}, {s(sW)}
        s_mul_i32 {s(sT0+2)}, {s(sT0+2)}, {40*128}
        s_add_u32 {s(sT0+2)}, {s(sT0+2)}, {s(sT0+8)}
        v_lshlrev_b32 v2, 7, v1
        s_mov_b64 exec, {(1 << NPF) - 1}
        buffer_load_dword {v(vDum)}, v2, {s(sWS,4)}, {s(sT0+2)} offen sc1
        s_mov_b64 exec, -1
        s_branch L_b5
        L_nopf:
        """)
    else:
        A(f"""
        s_cmp_lg_u32 {s(sW)}, 15
        s_cbranch_scc1 L_b5
        """)
    A(f"""
    L_poll:
    s_waitcnt vmcnt(0)
    v_xor_b32 v56, {s(sTAG)}, v56
    v_xor_b32 v57, {s(sTAG)}, v57
    v_xor_b32 v58, {s(sTAG)}, v58
    v_xor_b32 v59, {s(sTAG)}, v59
    v_or3_b32 v56, v56, v57, v58
    v_or_b32 v56, v56, v59
    v_cmp_ne_u32 vcc, 0, v56
    s_cbranch_vccz L_pollok
    buffer_load_dwordx4 v[56:59], {v(vFl)}, {s(sWS,4)}, {s(sT0+1)} offen sc1
    s_add_u32 {s(sT0+3)}, {s(sT0+3)}, 1
    s_cmp_lt_u32 {s(sT0+3)}, {SPIN}
    s_cbranch_scc1 L_poll
    L_pollok:
    s_cmp_lg_u32 s2, 0
    s_cbranch_scc1 L_b5
    s_mov_b64 exec, 1
    v_mov_b32 v2, {EPOCH}
    v_mov_b32 v3, {s(sTAG)}
    buffer_store_dword v3, v2, {s(sWS,4)}, 0 offen sc1
    s_mov_b64 exec, -1
    L_b5:
    v_mov_b32 {v(vP0+3)}, {v(vP0+1)}
    v_mov_b64 {v(vEe,2)}, 0
    s_waitcnt lgkmcnt(0)
    s_barrier
    """)
    stamp(6)
    if DIAG:
        A(f"s_lshl_b32 {s(sST+18)}, {s(sT0+15)}, 16")
        A(f"s_or_b32 {s(sST+18)}, {s(sST+18)}, {s(sT0+3)}")
        A(f"s_or_b32 {s(sST+18)}, {s(sST+18)}, 0x80000000")
    if PRIO:
        A(f"""
        s_cmp_lt_u32 {s(sW)}, 12
        s_cbranch_scc1 L_batch
        s_setprio 1
        """)
    A(f"""
    L_batch:
    s_lshl_b32 {s(sT0)}, {s(sBA)}, 4
    v_add_u32 v2, {s(sT0)}, v30
    v_mov_b32 v3, 0
    ds_read_b32 v31, v2 offset:{ORDER}
    """)
    A(f"ds_read_b32 v60, v3 offset:{ORDER}")
    A(f"ds_read_b32 v3, v3 offset:{FLAG}")
    for k in range(P):
        A(f"v_mov_b32 {v(vDAT+4*k+1)}, {v(vP0+1)}")
    A(f"""
    v_mov_b32 {v(vD)}, 1.0
    v_mov_b32 {v(vD+1)}, 1.0
    v_mov_b64 {v(vD+2,2)}, {v(vD,2)}
    s_waitcnt lgkmcnt(0)
    v_readfirstlane_b32 {s(sTR)}, v31
    v_and_b32 v31, 0xff, v31
    v_mul_u32_u24 {v(vL)}, {LSTR}, v31
    """)
    for k in range(P):
        A(f"ds_read_u16 {v(vDAT+4*k)}, {v(vL)} offset:{LIST+4*k}")
    A(f"""
    v_mul_u32_u24 v2, {XAS}, v31
    v_readfirstlane_b32 {s(sFL)}, v3
    v_readfirstlane_b32 {s(sT0+1)}, v60
    s_mov_b32 {s(sT0)}, {XAU}
    v_add3_u32 v2, v2, {v(vP0+1)}, {s(sT0)}
    ds_read_u16_d16_hi {v(vEe)}, {v(vL)} offset:{LIST+2}
    ds_read_u16_d16_hi {v(vEe+1)}, {v(vL)} offset:{LIST+6}
    ds_read_b128 {v(vXA,4)}, v2
    ds_read_b128 {v(vN,4)}, v2 offset:256
    ds_read_u16 {v(vP0+2*(P%2))}, {v(vL)} offset:{LIST+4*P}
    ds_read_u16 {v(vP0+2*((P+1)%2))}, {v(vL)} offset:{LIST+4*P+4}
    s_lshr_b32 {s(sTR)}, {s(sTR)}, 10
    s_sub_u32 {s(sTR)}, 63, {s(sTR)}
    s_cmp_lt_u32 {s(sT0+1)}, {(63-NCAP) << 10}
    s_cselect_b32 {s(sFL)}, 1, {s(sFL)}
    v_lshrrev_b32 {v(vO)}, 1, {v(vP0+1)}
    v_lshl_or_b32 {v(vO)}, v31, 15, {v(vO)}
    s_cmp_lg_u32 {s(sFL)}, 0
    s_cbranch_scc1 L_scan
    """)
    for k in range(P):
        A(f"s_waitcnt lgkmcnt({P-1-k+6})")
        A(f"buffer_load_dwordx4 {v(vDAT+4*k,4)}, {v(vDAT+4*k,2)}, {s(sTAB,4)}, 0 idxen offen {GSC}")
    def T(st):
        t = vT + 4*(st % 2)
        sel = "op_sel:[1,0,0] op_sel_hi:[1,1,1]" if st % 2 else "op_sel_hi:[0,1,1]"
        A(f"v_pk_fma_f32 {v(t,2)}, {v(vEe,2)}, {v(vC,2)}, {v(vXA,2)} {sel}")
        A(f"v_pk_fma_f32 {v(t+2,2)}, {v(vEe,2)}, {v(vC+2,2)}, {v(vXA+2,2)} {sel}")
    def M1(st):
        t = vT + 4*(st % 2); d = vDAT + 4*(st % P)
        A(f"v_mfma_f32_4x4x4_16b_bf16 {v(t,4)}, {v(vI,2)}, {v(d,2)}, {v(t,4)}")
    def M2(st):
        m = vMm + 4*(st % 2); d = vDAT + 4*(st % P)
        A(f"v_mfma_f32_4x4x4_16b_bf16 {v(m,4)}, {v(vI,2)}, {v(d+2,2)}, 0")
    def Ld(st):
        A(f"buffer_load_dwordx4 {v(vDAT+4*(st%P),4)}, {v(vP0+2*(st%2),2)}, {s(sTAB,4)}, 0 idxen offen {GSC}")
    A(f"""
    s_max_u32 {s(sTR)}, {s(sTR)}, 1
    s_min_u32 {s(sT0+1)}, {s(sTR)}, {P+1}
    s_sub_u32 {s(sT0+1)}, {s(sT0+1)}, 1
    s_waitcnt lgkmcnt(0)
    """)
    T(0); T(1)
    A(f"ds_read_u16_d16_hi {v(vEe)}, {v(vL)} offset:{LIST+4*2+2}")
    A(f"s_waitcnt vmcnt({P-1})")
    M1(0); M2(0)
    A(f"s_sub_u32 {s(sT0)}, {s(sTR)}, {P+2}")
    Ld(P)
    A("s_cbranch_scc1 L_drain0")
    def body(k, drain):
        z = vT + 4*(k % 2); m = vMm + 4*(k % 2)
        A(f"s_waitcnt vmcnt({P-1})")
        M1(k+1)
        A(f"v_exp_f32 {v(vEx)}, {v(z)}")
        M2(k+1)
        A(f"v_exp_f32 {v(vEx+1)}, {v(z+1)}")
        A(f"v_exp_f32 {v(vEx+2)}, {v(z+2)}")
        A(f"v_exp_f32 {v(vEx+3)}, {v(z+3)}")
        A("s_waitcnt lgkmcnt(0)")
        if drain:
            A(f"buffer_load_dword {v(vDum)}, off, {s(sOUT,4)}, {s(sOUT+2)}")
        else:
            Ld(k+1+P)
        T(k+2)
        if not drain:
            A(f"ds_read_u16 {v(vP0+2*((k+P)%2))}, {v(vL)} offset:{LIST+4*(k+2+P)}")
        A(f"ds_read_u16_d16_hi {v(vEe+(k+1)%2)}, {v(vL)} offset:{LIST+4*(k+3)+2}")
        for h in range(2):
            A(f"v_pk_fma_f32 {v(vN1+2*h,2)}, {v(m+2*h,2)}, {v(vD+2*h,2)}, {v(vN+2*h,2)}")
        for h in range(2):
            A(f"v_pk_fma_f32 {v(vD+2*h,2)}, {v(vD+2*h,2)}, {v(vEx+2*h,2)}, {v(vD+2*h,2)}")
        for h in range(2):
            A(f"v_pk_fma_f32 {v(vN+2*h,2)}, {v(vN+2*h,2)}, {v(vEx+2*h,2)}, {v(vN1+2*h,2)}")
        c = s(sT0+1) if drain else s(sT0)
        A(f"s_sub_u32 {c}, {c}, 1")
        if k < P-1:
            A("s_cbranch_scc1 L_loop_done" if drain else f"s_cbranch_scc1 L_drain{k+1}")
        else:
            A(f"v_add_u32 {v(vL)}, {4*P}, {v(vL)}")
            A("s_cbranch_scc0 L_drain0" if drain else "s_cbranch_scc0 L_loop")
    assert P % 2 == 0
    A("L_loop:")
    for k in range(P): body(k, False)
    for k in range(P):
        A(f"L_drain{k}:")
        body(k, True)
    A(f"""
    L_loop_done:
    v_rcp_f32 {v(vEx)}, {v(vD)}
    v_rcp_f32 {v(vEx+1)}, {v(vD+1)}
    v_rcp_f32 {v(vEx+2)}, {v(vD+2)}
    v_rcp_f32 {v(vEx+3)}, {v(vD+3)}
    v_pk_add_f32 {v(vD,2)}, {v(vD,2)}, {v(vD+2,2)}
    v_add_f32 v2, |{v(vN)}|, |{v(vN+1)}|
    v_add_f32 v3, |{v(vN+2)}|, |{v(vN+3)}|
    v_pk_mul_f32 {v(vN,2)}, {v(vN,2)}, {v(vEx,2)}
    v_pk_add_f32 v[2:3], v[2:3], {v(vD,2)}
    v_pk_mul_f32 {v(vN+2,2)}, {v(vN+2,2)}, {v(vEx+2,2)}
    v_add_f32 v2, v2, v3
    v_cmp_ngt_f32 vcc, 0x7b800000, v2
    s_waitcnt lgkmcnt(0)
    s_cbranch_vccnz L_safe
    L_silu:
    v_pk_mul_f32 {v(vT,2)}, {v(vN,2)}, {s(sL2E,2)}
    v_pk_mul_f32 {v(vT+2,2)}, {v(vN+2,2)}, {s(sL2E,2)}
    v_exp_f32 {v(vEx)}, {v(vT)}
    v_exp_f32 {v(vEx+1)}, {v(vT+1)}
    v_exp_f32 {v(vEx+2)}, {v(vT+2)}
    v_exp_f32 {v(vEx+3)}, {v(vT+3)}
    v_pk_add_f32 {v(vEx,2)}, {v(vEx,2)}, 1.0 op_sel_hi:[1,0]
    v_pk_add_f32 {v(vEx+2,2)}, {v(vEx+2,2)}, 1.0 op_sel_hi:[1,0]
    v_rcp_f32 {v(vEx)}, {v(vEx)}
    v_rcp_f32 {v(vEx+1)}, {v(vEx+1)}
    v_rcp_f32 {v(vEx+2)}, {v(vEx+2)}
    v_rcp_f32 {v(vEx+3)}, {v(vEx+3)}
    v_pk_mul_f32 {v(vN,2)}, {v(vN,2)}, {v(vEx,2)}
    v_pk_mul_f32 {v(vN+2,2)}, {v(vN+2,2)}, {v(vEx+2,2)}
    v_cvt_pk_bf16_f32 {v(vN1)}, {v(vN)}, {v(vN+1)}
    v_cvt_pk_bf16_f32 {v(vN1+1)}, {v(vN+2)}, {v(vN+3)}
    s_sub_u32 {s(sT0)}, {s(sBA)}, 12
    buffer_store_dwordx2 {v(vN1,2)}, {v(vO)}, {s(sOUT,4)}, {s(sOO)} offen {OUTSC}
    s_add_u32 {s(sBA)}, {s(sBA)}, 4
    s_cmp_lt_u32 {s(sT0)}, 4
    s_cbranch_scc0 L_fin
    s_waitcnt vmcnt(1)
    s_branch L_batch
    L_fin:
    """)
    if DIAG:
        stamp(7)
        A("s_waitcnt vmcnt(0)")
        stamp(8)
        dump_stamps()
    A("L_end:")
    A("s_endpgm")
    A("L_code_end:")
    A(f"""
    L_slotretry:
    buffer_load_dwordx4 v[8:11], {v(vSl)}, {s(sWS,4)}, {s(sT0)} offen sc1
    s_add_u32 {s(sT0+15)}, {s(sT0+15)}, 1
    s_cmp_lt_u32 {s(sT0+15)}, {SPIN}
    s_cbranch_scc1 L_slotchk
    s_waitcnt vmcnt(0)
    v_mov_b32 v11, -1
    s_branch L_slotok
    """)
    def safe_step():
        d = vDAT
        A(f"buffer_load_dwordx4 {v(d,4)}, {v(vP0,2)}, {s(sTAB,4)}, 0 idxen offen sc1")
        T(0)
        A(f"""
        s_waitcnt vmcnt(0)
        v_lshlrev_b32 {v(vN1)}, 16, {v(d)}
        v_and_b32 {v(vN1+1)}, 0xffff0000, {v(d)}
        v_lshlrev_b32 {v(vN1+2)}, 16, {v(d+1)}
        v_and_b32 {v(vN1+3)}, 0xffff0000, {v(d+1)}
        v_pk_add_f32 {v(vT,2)}, {v(vT,2)}, {v(vN1,2)}
        v_pk_add_f32 {v(vT+2,2)}, {v(vT+2,2)}, {v(vN1+2,2)}
        v_lshlrev_b32 {v(vN1)}, 16, {v(d+2)}
        v_and_b32 {v(vN1+1)}, 0xffff0000, {v(d+2)}
        v_lshlrev_b32 {v(vN1+2)}, 16, {v(d+3)}
        v_and_b32 {v(vN1+3)}, 0xffff0000, {v(d+3)}
        """)
        for k in range(4): A(f"v_exp_f32 {v(vEx+k)}, {v(vT+k)}")
        A(f"v_pk_add_f32 {v(vEx,2)}, {v(vEx,2)}, 1.0 op_sel_hi:[1,0]")
        A(f"v_pk_add_f32 {v(vEx+2,2)}, {v(vEx+2,2)}, 1.0 op_sel_hi:[1,0]")
        for k in range(4): A(f"v_rcp_f32 {v(vEx+k)}, {v(vEx+k)}")
        A(f"v_pk_fma_f32 {v(vN,2)}, {v(vN1,2)}, {v(vEx,2)}, {v(vN,2)}")
        A(f"v_pk_fma_f32 {v(vN+2,2)}, {v(vN1+2,2)}, {v(vEx+2,2)}, {v(vN+2,2)}")
    A(f"""
    L_safe:
    v_mul_u32_u24 {v(vL)}, {LSTR}, v31
    v_mul_u32_u24 v2, {XAS}, v31
    s_mov_b32 {s(sT0)}, {XAU}
    v_add3_u32 v2, v2, {v(vP0+1)}, {s(sT0)}
    ds_read_b128 {v(vN,4)}, v2 offset:256
    s_mov_b32 {s(sT0)}, {s(sTR)}
    L_safe_loop:
    ds_read_b32 v2, {v(vL)} offset:{LIST}
    v_add_u32 {v(vL)}, 4, {v(vL)}
    s_waitcnt lgkmcnt(0)
    v_and_b32 {v(vP0)}, 0xffff, v2
    v_and_b32 {v(vEe)}, 0xffff0000, v2
    """)
    safe_step()
    A(f"""
    s_sub_u32 {s(sT0)}, {s(sT0)}, 1
    s_cmp_lg_u32 {s(sT0)}, 0
    s_cbranch_scc1 L_safe_loop
    s_branch L_silu
    L_scan:
    s_waitcnt lgkmcnt(0)
    v_lshlrev_b32 v60, 7, v31
    v_add_u32 v60, {s(sB)}, v60
    v_lshlrev_b32 v56, 2, v1
    v_lshlrev_b32 v57, 1, v1
    s_mov_b32 {s(sT0)}, 0
    L_scan_outer:
    global_load_dword v58, v56, {s(sDST,2)}
    global_load_dword v59, v56, {s(sSRC,2)}
    global_load_ushort v61, v57, {s(sE,2)}
    v_add_u32 v56, 256, v56
    v_add_u32 v57, 128, v57
    s_waitcnt vmcnt(0)
    v_and_b32 v2, 127, v58
    v_cmp_eq_u32 {s(sM,2)}, {s(sB)}, v2
    v_lshlrev_b32 v61, 16, v61
    L_scan_inner:
    s_cmp_eq_u64 {s(sM,2)}, 0
    s_cbranch_scc1 L_scan_next
    s_ff1_i32_b64 {s(sT0+1)}, {s(sM,2)}
    s_bitset0_b64 {s(sM,2)}, {s(sT0+1)}
    v_readlane_b32 {s(sT0+2)}, v58, {s(sT0+1)}
    v_readlane_b32 {s(sT0+3)}, v59, {s(sT0+1)}
    v_readlane_b32 {s(sT0+14)}, v61, {s(sT0+1)}
    s_nop 1
    v_cmp_eq_u32 vcc, {s(sT0+2)}, v60
    s_and_b64 exec, vcc, vcc
    s_cbranch_scc0 L_scan_skip
    v_mov_b32 {v(vP0)}, {s(sT0+3)}
    v_mov_b32 {v(vEe)}, {s(sT0+14)}
    """)
    safe_step()
    A(f"""
    L_scan_skip:
    s_mov_b64 exec, -1
    s_branch L_scan_inner
    L_scan_next:
    s_add_u32 {s(sT0)}, {s(sT0)}, 1
    s_cmp_lt_u32 {s(sT0)}, {E//64}
    s_cbranch_scc1 L_scan_outer
    s_branch L_silu
    """)

A('.amdgcn_target "amdgcn-amd-amdhsa--gfx950"')
A(".text")
A(f".globl {NAME}_kernel")
A(f".type {NAME}_kernel,@function")
kernel()
A('.section .rodata,"a"')
A(".p2align 6")
A(f".amdhsa_kernel {NAME}_kernel")
A(""".amdhsa_next_free_vgpr 120
.amdhsa_next_free_sgpr 102
.amdhsa_accum_offset 120
.amdhsa_group_segment_fixed_size 0
.amdhsa_kernarg_size 80
.amdhsa_user_sgpr_count 2
.amdhsa_user_sgpr_kernarg_segment_ptr 1
.amdhsa_system_sgpr_workgroup_id_x 1
.end_amdhsa_kernel""")
head = open("cdna_kernels/" + NAME + ".s.ref").read().split("\n")
head = [l for l in head if l.startswith(";") and "@launch" not in l and "launch geometry" not in l and "grid=ceil" not in l]
head.append(f"; @launch grid=(256,1,1) block=(1024,1,1) lds={LDSZ}")
open(sys.argv[1], "w").write("\n".join(head) + "\n" + A.text())
```

```python
import sys
from asmlib import Asm, v, s

NAME = "gather_scatter__edge_featured_mpnn_egc__graph"
N, E = 10000, 160000
SLICE = 10240 * 256
SLOT0 = 0x500000
FLAG0 = 0x700000
EPOCH = 0x710000
WS_USED = EPOCH + 256
STAMP0 = 0x800000
SCAP = 48
NCAP = 48
LSTR = 388
ISTR = 392
NLOG2E = 0xBFB8AA3B

opts = dict(a.split("=") for a in sys.argv[2:])
DIAG = int(opts.get("diag", 0))
P = int(opts.get("P", 4))
NPF = int(opts.get("npf", 16))
PRIO = int(opts.get("prio", 3))
CPF = int(opts.get("cpf", 1))
CLS = int(opts.get("cls", 1))
OUTSC = opts.get("outsc", "sc1")
GSC = opts.get("gsc", "sc1")
SPIN = 30000
RPRIO = int(opts.get("rprio", 1))
SLW = int(opts.get("slw", 1))
TH = [int(x) for x in opts.get("th", "4,7,6").split(",")]
DUMMY = 0x3fff
EARLY = int(opts.get("early", 0))
PF1 = int(opts.get("pf1", 0))
PF2 = int(opts.get("pf2", 0))
EXP = opts.get("exp", "")
STS = opts.get("st", "b1,g1,ack,slot,b4,b5,end,drain").split(",")

CNT2, HIST, ORDER, FLAG, GCNT, CVEC = 64, 704, 960, 1280, 1284, 1536
WA = 2048
WU, WB, WV = WA + 16384, WA + 32768, WA + 49152
XL = WA + 65536
XAS = 528
XAU = WB
IMG = XL + 20480
LIST = IMG + 32*ISTR
LDSZ = 163840
CBASE = LDSZ - 512
assert XAU + 80*XAS <= IMG and LIST % 16 == 0 and LIST + 32768 + 12288 <= CBASE and 80*LSTR + 64 <= 32768

A = Asm()
sX, sE, sSRC, sDST, sU, sV, sG, sOUTP = 4, 6, 8, 10, 12, 14, 16, 18
sWS, sTAB, sOUT = 20, 24, 28
sW, sJ, sF, sB, sC, sQB, sTAG = 32, 33, 34, 35, 36, 37, 38
sL2E = 40
sF128, sB256, sSL, sGO, sBA, sTR, sFL, sOO, sRT = 42, 43, 52, 53, 54, 55, 56, 57, 58
sT0 = 44
sM = 60
sST = 80

def stamp(name):
    if DIAG and "c" + name in STS:
        k = STS.index("c" + name) + 1
        A(f"s_memtime {s(sST+2*k,2)}")
    if DIAG and name in STS:
        k = STS.index(name) + 1
        A(f"s_memrealtime {s(sST+2*k,2)}")
        A("s_waitcnt lgkmcnt(0)")

def dump_stamps():
    A("s_mov_b64 exec, 1")
    A(f"s_lshl_b32 {s(sT0)}, s2, 4")
    A(f"s_add_u32 {s(sT0)}, {s(sT0)}, {s(sW)}")
    A(f"s_lshl_b32 {s(sT0)}, {s(sT0)}, 6")
    A(f"s_add_u32 {s(sT0)}, {s(sT0)}, {STAMP0}")
    A("v_mov_b32 v1, 0")
    for k in range(10):
        A(f"v_mov_b32 v2, {s(sST+2*k)}")
        A(f"buffer_store_dword v2, v1, {s(sWS,4)}, {s(sT0)} offen offset:{4*k}")

WF, XF, AC = 8, 40, 88
vXa, vWa, vSo, vXo = 4, 112, 113, 114
vG4, vI, vP0, vI16, vDum, vG4e, vOob = 115, 116, 118, 122, 124, 125, 126
vC, vXA, vN, vD, vL, vO, vNode, vEe = 4, 8, 12, 16, 20, 22, 23, 24
vT, vMm, vEx, vN1, vAt, vDAT = 28, 36, 44, 48, 52, 64
NA = 2 if (P // 2) % 2 == 0 else P // 2
sINC = 76
sPO, sEX, sTH, sCNT, sXT = 39, 78, 79, 50, 51

def epoch_load():
    A(f"""
    s_add_u32 {s(sT0+2)}, {s(sWS)}, {EPOCH}
    s_addc_u32 {s(sT0+3)}, {s(sWS+1)}, 0
    s_load_dword {s(sTAG)}, {s(sT0+2,2)}, 0
    """)

def common_scalars():
    A(f"""
    s_mov_b32 {s(sWS+2)}, {STAMP0 + 0x100000 if DIAG else WS_USED}
    s_mov_b32 {s(sWS+3)}, 0x20000
    s_mov_b32 {s(sL2E)}, {NLOG2E}
    s_mov_b32 {s(sL2E+1)}, {NLOG2E}
    s_and_b32 {s(sQB)}, {s(sJ)}, 3
    s_mul_i32 {s(sSL)}, {s(sF)}, {SLICE}
    v_and_b32 v1, 63, v0
    v_and_b32 v2, 15, v0
    """)

def consts(t0, t1):
    A(f"""
    v_and_b32 {v(t0)}, 1, v1
    v_lshlrev_b32 {v(t0)}, 4, {v(t0)}
    v_mov_b32 {v(t1)}, 0x3f80
    v_lshlrev_b32 {v(t1)}, {v(t0)}, {v(t1)}
    v_and_b32 {v(t0)}, 2, v1
    v_cmp_eq_u32 vcc, 0, {v(t0)}
    v_lshlrev_b32 {v(vP0+1)}, 4, v2
    v_lshrrev_b32 {v(vG4)}, 4, v1
    v_cndmask_b32 {v(vI)}, 0, {v(t1)}, vcc
    v_sub_u32 {v(vI+1)}, {v(t1)}, {v(vI)}
    v_lshlrev_b32 {v(vG4)}, 2, {v(vG4)}
    v_mov_b32 {v(vP0+3)}, {v(vP0+1)}
    v_and_b32 {v(vG4e)}, 12, v1
    v_cmp_eq_u32 vcc, {v(vG4e)}, {v(vG4)}
    v_and_b32 {v(t0)}, 3, v1
    v_lshlrev_b32 {v(t0)}, 2, {v(t0)}
    v_cndmask_b32 {v(vI16)}, 0, {v(vI)}, vcc
    v_cndmask_b32 {v(vI16+1)}, 0, {v(vI+1)}, vcc
    v_cmp_ne_u32 vcc, {v(t0)}, {v(vG4)}
    v_mov_b32 {v(t1)}, 0x100000
    s_mov_b32 {s(sINC)}, {4*P}
    s_mov_b32 {s(sINC+1)}, {4*P}
    v_cndmask_b32 {v(vOob)}, 0, {v(t1)}, vcc
    s_xor_b32 {s(sT0+2)}, {s(sW)}, 3
    s_bitcmp1_b32 {s(sW)}, 2
    s_cselect_b32 {s(sBA)}, {s(sT0+2)}, {s(sW)}
    s_add_u32 {s(sOO)}, {s(sB256)}, {s(sF128)}
    s_add_u32 {s(sTAB)}, {s(sWS)}, {s(sSL)}
    s_addc_u32 {s(sTAB+1)}, {s(sWS+1)}, 0x1000000
    s_mov_b32 {s(sTAB+2)}, {N}
    s_mov_b32 {s(sTAB+3)}, 0x20000
    s_mov_b64 {s(sOUT,2)}, {s(sOUTP,2)}
    s_mov_b32 {s(sOUT+2)}, {N*256}
    s_mov_b32 {s(sOUT+3)}, 0x20000
    s_mov_b64 {s(sRT,2)}, 0
    """)

def slot(st): return vDAT + 6*(st % P)
vOa = 110

def slotconsts():
    A(f"""
    v_add_u32 v2, {v(vP0+1)}, {v(vG4)}
    ds_read_b32 v3, v2 offset:{CVEC}
    v_mov_b32 v2, 0
    """)
    for a in range(NA):
        A(f"v_mov_b64 {v(vAt+4*a+2,2)}, {v(vI16,2)}")
    for k in range(P):
        A(f"v_mov_b32 {v(slot(k)+(k%2))}, 0")
    A("s_waitcnt lgkmcnt(0)")
    A("v_cvt_pk_bf16_f32 v3, v2, v3")
    for k in range(P):
        A(f"v_mov_b32 {v(slot(k)+1-(k%2))}, v3")
    A(f"""
    s_lshl_b32 {s(sT0+3)}, {s(sBA)}, 4
    v_add_u32 {v(vOa)}, {s(sT0+3)}, {v(vG4)}
    v_add_u32 {v(vOa+1)}, {s(sT0+3)}, {v(vG4e)}
    s_cmp_ge_u32 {s(sW)}, 12
    s_cselect_b32 {s(sEX)}, {TH[2]}, 0
    """)

def binning():
    A(f"""
    s_mul_i32 {s(sT0)}, {s(sQB)}, -128
    s_movk_i32 {s(sT0+1)}, 0x1fc
    s_mov_b32 {s(sT0+2)}, 0xffff0000
    v_mov_b32 v18, 8
    v_mov_b32 v19, {CBASE}
    s_mov_b64 exec, {s(sM,2)}
    s_waitcnt vmcnt(2)
    """)
    stamp("edge")
    for i in range(4):
        A(f"""
        v_lshl_add_u32 {v(20+i)}, {v(8+i)}, 2, {s(sT0)}
        v_and_or_b32 {v(20+i)}, {v(20+i)}, {s(sT0+1)}, v19
        ds_add_rtn_u32 {v(20+i)}, {v(20+i)}, v18 offset:384
        """)
    A(f"""
    s_waitcnt vmcnt(0)
    v_lshl_or_b32 v12, v16, 16, v12
    v_and_or_b32 v13, v16, {s(sT0+2)}, v13
    v_lshl_or_b32 v14, v17, 16, v14
    v_and_or_b32 v15, v17, {s(sT0+2)}, v15
    s_waitcnt lgkmcnt(0)
    """)
    for i in range(4):
        A(f"ds_write2_b32 {v(20+i)}, {v(12+i)}, {v(8+i)} offset0:0 offset1:1")
    A("s_mov_b64 exec, -1")

def kernel():
    A(".p2align 8")
    A(f"{NAME}_kernel:")
    A(f"""
    s_cmp_ge_u32 s2, 256
    s_cbranch_scc1 L_end
    """)
    if DIAG:
        for k in range(10):
            A(f"s_mov_b64 {s(sST+2*k,2)}, 0")
        A(f"s_memrealtime {s(sST,2)}")
    A(f"""
    s_load_dwordx16 s[4:19], s[0:1], 0
    s_load_dwordx2 {s(sWS,2)}, s[0:1], 72
    v_lshrrev_b32 v1, 6, v0
    v_lshlrev_b32 v2, 4, v0
    v_readfirstlane_b32 {s(sW)}, v1
    s_lshr_b32 {s(sJ)}, s2, 3
    s_and_b32 {s(sT0)}, s2, 7
    s_lshr_b32 {s(sC)}, s2, 5
    s_lshl3_add_u32 {s(sC)}, {s(sT0)}, {s(sC)}
    s_and_b32 {s(sF)}, s2, 1
    s_bfe_u32 {s(sB)}, s2, 0x20001
    s_lshl_b32 {s(sB)}, {s(sB)}, 5
    s_add_u32 {s(sB)}, {s(sB)}, {s(sJ)}
    s_lshl_b32 {s(sF128)}, {s(sF)}, 7
    s_lshl_b32 {s(sB256)}, {s(sB)}, 8
    s_cmp_ge_u32 {s(sW)}, 12
    s_cbranch_scc1 L_dmawave
    v_mov_b32 v8, -1
    v_mov_b32 v9, -1
    v_mov_b64 v[10:11], v[8:9]
    v_add_u32 v12, {IMG}, v2
    ds_write_b128 v12, v[8:11]
    s_cmp_ge_u32 {s(sW)}, 10
    s_cbranch_scc1 L_initwave
    """)
    if CPF:
        A(f"""
        s_cmp_lg_u32 {s(sW)}, 0
        s_cbranch_scc1 L_nocpf
        s_getpc_b64 {s(sT0+2,2)}
        v_lshlrev_b32 v3, 7, v0
        v_min_u32 v3, L_code_end-L_nocpf, v3
        global_load_dword {v(vDum)}, v3, {s(sT0+2,2)}
        L_nocpf:
        """)
    A(f"""
    s_mul_i32 {s(sT0+1)}, {s(sC)}, 10000
    v_add_u32 v2, {s(sT0+1)}, v2
    v_cmp_gt_u32 vcc, 625, v0
    v_lshrrev_b32 v3, 1, v2
    s_mov_b64 exec, vcc
    s_mov_b64 {s(sM,2)}, vcc
    s_waitcnt lgkmcnt(0)
    global_load_dwordx4 v[8:11], v2, {s(sDST,2)}
    global_load_dwordx4 v[12:15], v2, {s(sSRC,2)}
    global_load_dwordx2 v[16:17], v3, {s(sE,2)}
    s_mov_b64 exec, -1
    s_barrier
    """)
    stamp("b0")
    epoch_load()
    common_scalars()
    A(f"""
    s_cmp_ge_u32 {s(sW)}, 8
    s_cbranch_scc1 L_rbin
    s_lshr_b32 {s(sT0)}, {s(sW)}, 2
    s_mul_i32 {s(sT0)}, {s(sT0)}, 3
    s_and_b32 {s(sT0+1)}, {s(sW)}, 3
    s_lshl_b32 {s(sT0+2)}, {s(sT0)}, 12
    s_add_u32 {s(sT0+2)}, {s(sT0+2)}, {XL}
    v_lshrrev_b32 v3, 4, v1
    v_xor_b32 {v(vXa)}, v2, v3
    v_lshlrev_b32 {v(vXa)}, 4, {v(vXa)}
    v_lshl_or_b32 {v(vXa)}, v2, 8, {v(vXa)}
    v_add_u32 {v(vXa)}, {s(sT0+2)}, {v(vXa)}
    v_xor_b32 {v(vXa+1)}, 64, {v(vXa)}
    v_xor_b32 {v(vXa+2)}, 128, {v(vXa)}
    v_xor_b32 {v(vXa+3)}, 192, {v(vXa)}
    v_bfe_u32 {v(vSo)}, v1, 3, 2
    v_xor_b32 {v(vSo)}, {s(sT0+1)}, {v(vSo)}
    v_and_b32 {v(vWa)}, 3, v1
    v_lshlrev_b32 {v(vWa)}, 3, {v(vWa)}
    v_lshl_or_b32 {v(vWa)}, {v(vSo)}, 5, {v(vWa)}
    v_bfe_u32 {v(vSo)}, v1, 2, 2
    v_lshl_or_b32 {v(vWa)}, {v(vSo)}, 7, {v(vWa)}
    v_lshl_or_b32 {v(vWa)}, v3, 10, {v(vWa)}
    v_add_u32 {v(vWa)}, {WA}, {v(vWa)}
    v_lshlrev_b32 v3, 4, v3
    v_lshl_or_b32 {v(vSo)}, v2, 15, v3
    s_lshl_b32 {s(sT0+1)}, {s(sT0+1)}, 6
    s_mul_i32 {s(sT0+2)}, {s(sT0)}, {16*XAS}
    s_add_u32 {s(sT0+2)}, {s(sT0+2)}, {s(sT0+1)}
    s_add_u32 {s(sT0+2)}, {s(sT0+2)}, {XAU}
    v_mul_u32_u24 {v(vXo)}, {XAS}, v2
    v_add3_u32 {v(vXo)}, {v(vXo)}, v3, {s(sT0+2)}
    s_lshl_b32 {s(sT0)}, {s(sT0)}, 19
    s_add_u32 {s(sGO)}, {s(sSL)}, {s(sB256)}
    s_add_u32 {s(sGO)}, {s(sGO)}, {s(sT0+1)}
    s_add_u32 {s(sGO)}, {s(sGO)}, {s(sT0)}
    """)
    binning()
    consts(24, 25)
    stamp("bin")
    A(f"""
    s_cmp_ge_u32 {s(sW)}, 4
    s_waitcnt lgkmcnt(0)
    s_barrier
    """)
    stamp("b1")
    def rdW(st, base):
        for m in range(2):
            for hh in range(2):
                A(f"ds_read_b64_tr_b16 {v(WF+16*m+4*st+2*hh,2)}, {v(vWa)} offset:{base+m*16384+st*4096+hh*512}")
    def rdX(t, st):
        A(f"ds_read_b128 {v(XF+16*t+4*st,4)}, {v(vXa+st)} offset:{t*4096}")
    def mm1(t, st, m):
        acc = v(AC+8*t+4*m, 4)
        A(f"v_mfma_f32_16x16x32_bf16 {acc}, {v(WF+16*m+4*st,4)}, {v(XF+16*t+4*st,4)}, {acc if st else 0}")
    def mm(t, st):
        mm1(t, st, 0); mm1(t, st, 1)
    def epi1_ops(t):
        a = AC + 8*t
        ops = [f"v_mul_f32 {v(a+k)}, {s(sL2E)}, {v(a+k)}" for k in range(4)]
        ops += [f"v_cvt_pk_bf16_f32 {v(a+k)}, {v(a+2*k)}, {v(a+2*k+1)}" for k in range(4)]
        ops += [f"buffer_store_dwordx4 {v(a,4)}, {v(vSo)}, {s(sWS,4)}, {s(sGO)} offen sc1", f"s_add_u32 {s(sGO)}, {s(sGO)}, {16*32768}"]
        return ops
    def epi2_ops(t):
        a = AC + 8*t
        ops = [f"v_mul_f32 {v(a+k)}, {s(sL2E)}, {v(a+k)}" for k in range(4)]
        ops += [f"ds_write_b128 {v(vXo)}, {v(a+4,4)} offset:{t*16*XAS+256}", f"ds_write_b128 {v(vXo)}, {v(a,4)} offset:{t*16*XAS}"]
        return ops
    def tiles12(epi, tag):
        for st in range(4): mm(1, st)
        A(f"s_cbranch_scc1 L_two_{tag}")
        if tag == "g1": A("s_waitcnt lgkmcnt(0)")
        e0 = epi(0)
        k = 0
        for st in range(4):
            for m in range(2):
                mm1(2, st, m)
                for o in e0[k:k+2]: A(o)
                k += 2
        for o in epi(1): A(o)
        if tag == "g2": A("s_nop 0")
        for o in epi(2): A(o)
        A(f"s_branch L_done_{tag}")
        A(f"L_two_{tag}:")
        for o in epi(0): A(o)
        A("s_nop 1")
        for o in epi(1): A(o)
        A(f"L_done_{tag}:")
    for st in range(3):
        rdW(st, 32768); rdX(0, st)
    A("s_waitcnt lgkmcnt(10)"); mm(0, 0)
    rdW(3, 32768); rdX(0, 3)
    A("s_waitcnt lgkmcnt(10)"); mm(0, 1)
    for st in range(4): rdX(1, st)
    A("s_waitcnt lgkmcnt(9)"); mm(0, 2)
    A("s_waitcnt lgkmcnt(4)"); mm(0, 3)
    A("s_waitcnt lgkmcnt(0)")
    A("s_cbranch_scc1 L_nox2")
    for st in range(4): rdX(2, st)
    A("L_nox2:")
    tiles12(epi1_ops, "g1")
    stamp("g1")
    A(f"""
    s_add_u32 {s(sTAG)}, {s(sTAG)}, 1
    v_lshlrev_b32 v2, 10, v1
    v_mov_b32 v3, {s(sTAG)}
    s_lshl_b32 {s(sT0+1)}, s2, 2
    s_add_u32 {s(sT0+1)}, {s(sT0+1)}, {FLAG0}
    s_waitcnt vmcnt(0)
    """)
    stamp("ack")
    A(f"""
    s_cmp_lg_u32 {s(sW)}, 0
    s_barrier
    s_cbranch_scc1 L_noflag
    s_mov_b64 exec, 0xff
    buffer_store_dword v3, v2, {s(sWS,4)}, {s(sT0+1)} offen sc1
    s_mov_b64 exec, -1
    L_noflag:
    """)
    stamp("b2")
    for st in range(3): rdW(st, 0)
    A("s_waitcnt lgkmcnt(8)"); mm(0, 0)
    rdW(3, 0)
    A("s_waitcnt lgkmcnt(8)"); mm(0, 1)
    A("s_waitcnt lgkmcnt(4)"); mm(0, 2)
    A(f"s_cmp_ge_u32 {s(sW)}, 4")
    A("s_waitcnt lgkmcnt(0)"); mm(0, 3)
    tiles12(epi2_ops, "g2")
    stamp("g2")
    slotconsts()
    A("s_branch L_b4")

    A(f"""
    L_dmawave:
    v_and_b32 v3, 255, v0
    v_lshrrev_b32 v5, 3, v3
    v_lshrrev_b32 v6, 4, v3
    v_and_b32 v4, 2, v5
    v_and_or_b32 v4, v6, 4, v4
    v_xor_b32 v4, v4, v0
    v_and_b32 v4, 7, v4
    v_lshl_or_b32 v4, v4, 4, {s(sF128)}
    v_lshl_or_b32 v8, v5, 8, v4
    v_xor_b32 v5, v6, v0
    v_and_b32 v5, 15, v5
    v_lshl_or_b32 v5, v5, 4, {s(sB256)}
    v_lshl_or_b32 v16, v6, 15, v5
    s_lshl_b32 {s(sT0+6)}, {s(sW)}, 10
    s_add_u32 m0, {s(sT0+6)}, {XL - 12*1024}
    s_waitcnt lgkmcnt(0)
    """)
    A(f"global_load_lds_dwordx4 v16, {s(sX,2)}")
    for a in range(1, 5):
        A(f"s_add_u32 m0, {s(sT0+6)}, {XL - 12*1024 + a*4096}")
        A(f"v_add_u32 v17, {a*16*32768}, v16")
        if a == 4: A(f"v_min_u32 v17, {N*256-16}, v17")
        A(f"global_load_lds_dwordx4 v17, {s(sX,2)}")
    A("s_barrier")
    stamp("b0")
    for a in range(4):
        A(f"s_add_u32 m0, {s(sT0+6)}, {WB - 12*1024 + a*4096}")
        A(f"v_add_u32 v17, {32768 + a*8192}, v8")
        A(f"global_load_lds_dwordx4 v17, {s(sG,2)}")
        A(f"s_add_u32 m0, {s(sT0+6)}, {WV - 12*1024 + a*4096}")
        A(f"v_add_u32 {v(8+a)}, {a*8192}, v8")
        A(f"global_load_lds_dwordx4 {v(8+a)}, {s(sV,2)}")
    epoch_load()
    for a in range(4):
        A(f"s_add_u32 m0, {s(sT0+6)}, {(WA - 12*1024 + a*4096) & 0xffffffff}")
        A("s_nop 0")
        A(f"global_load_lds_dwordx4 {v(8+a)}, {s(sG,2)}")
        A(f"s_add_u32 m0, {s(sT0+6)}, {WU - 12*1024 + a*4096}")
        A("s_nop 0")
        A(f"global_load_lds_dwordx4 {v(8+a)}, {s(sU,2)}")
    common_scalars()
    stamp("bin")
    A("s_branch L_rb1")

    A(f"""
    L_initwave:
    v_and_b32 v1, 31, v0
    v_mul_u32_u24 v12, {ISTR}, v1
    v_add_u32 v12, {IMG}, v12
    v_lshlrev_b32 v13, 2, v1
    v_add_u32 v13, {CBASE}, v13
    ds_write_b32 v13, v12 offset:384
    v_lshlrev_b32 v13, 3, v1
    v_add_u32 v13, {IMG + 12288}, v13
    ds_write_b64 v13, v[8:9]
    v_and_b32 v3, 15, v0
    s_add_u32 {s(sT0+7)}, {s(sF128)}, 65536
    v_lshl_add_u32 v3, v3, 3, {s(sT0+7)}
    s_waitcnt lgkmcnt(0)
    s_barrier
    global_load_dwordx2 v[16:17], v3, {s(sG,2)}
    """)
    stamp("b0")
    epoch_load()
    A(f"""
    v_mov_b32 v8, {DUMMY}
    v_mov_b32 v9, v8
    v_mov_b64 v[10:11], v[8:9]
    v_add_u32 v12, {LIST - 640*16}, v2
    """)
    for a in range(16):
        A(f"ds_write_b128 v12, v[8:11] offset:{a*2048}")
    A(f"""
    v_subrev_u32 v3, 640, v0
    v_mul_u32_u24 v5, {LSTR}, v3
    v_add_u32 v5, {LIST + 4*NCAP}, v5
    v_subrev_u32 v4, 4, v5
    v_lshlrev_b32 v6, 3, v3
    v_mov_b64 v[8:9], 0
    v_cmp_gt_u32 vcc, 80, v3
    s_mov_b64 exec, vcc
    ds_write_b64 v6, v[4:5] offset:{CNT2}
    ds_write_b64 v6, v[8:9] offset:{HIST}
    s_mov_b64 exec, -1
    """)
    common_scalars()
    A(f"""
    s_waitcnt vmcnt(0)
    v_lshlrev_b32 v4, 16, v16
    v_and_b32 v5, 0xffff0000, v16
    v_lshlrev_b32 v6, 16, v17
    v_and_b32 v7, 0xffff0000, v17
    v_pk_mul_f32 v[4:5], v[4:5], {s(sL2E,2)}
    v_pk_mul_f32 v[6:7], v[6:7], {s(sL2E,2)}
    v_lshlrev_b32 v3, 4, v2
    ds_write_b128 v3, v[4:7] offset:{CVEC}
    s_branch L_rb1
    L_rbin:
    """)
    assert CNT2 + 640 == HIST and HIST + 640 >= GCNT + 4 and HIST + 640 <= CVEC
    binning()
    stamp("bin")
    vTagB = 30
    A(f"""
    L_rb1:
    v_subrev_u32 v3, 512, v0
    v_lshrrev_b32 v4, 4, v3
    v_mul_u32_u24 v5, {ISTR}, v4
    v_lshl_add_u32 v5, v2, 3, v5
    v_add_u32 v5, {IMG}, v5
    v_and_b32 v6, 31, v0
    v_lshlrev_b32 v7, 2, v6
    v_add_u32 v7, {CBASE}, v7
    v_mul_u32_u24 v6, {ISTR}, v6
    v_add_u32 v6, {IMG + 8*SCAP}, v6
    v_lshlrev_b32 v16, 4, v2
    v_lshl_or_b32 v16, v4, 14, v16
    s_lshl_b32 {s(sT0)}, {s(sQB)}, 19
    s_lshl_b32 {s(sT0+1)}, {s(sC)}, 8
    s_add_u32 {s(sT0)}, {s(sT0)}, {s(sT0+1)}
    s_add_u32 {s(sT0)}, {s(sT0)}, {SLOT0}
    {"s_setprio 2" if RPRIO else ""}
    s_waitcnt vmcnt(8) lgkmcnt(0)
    s_barrier
    """)
    stamp("b1")
    A(f"""
    ds_read2_b32 v[12:13], v5 offset0:1 offset1:33
    ds_read2_b32 v[10:11], v5 offset0:64 offset1:65
    ds_read2_b32 v[8:9], v5 offset0:0 offset1:32
    ds_read_b32 v14, v7 offset:384
    v_mad_u32_u24 {v(vTagB)}, v2, 37, {s(sTAG)}
    v_lshlrev_b32 v15, 24, {v(vTagB)}
    s_waitcnt lgkmcnt(0)
    v_cmp_gt_u32 vcc, v14, v6
    v_bfe_u32 v12, v12, 7, 8
    v_bfe_u32 v13, v13, 7, 8
    v_bfe_u32 v11, v11, 7, 8
    v_lshl_or_b32 v12, v13, 8, v12
    v_lshl_or_b32 v11, v11, 16, v12
    s_cbranch_vccnz L_ovf
    L_noovf:
    v_or_b32 v11, v11, v15
    v_lshlrev_b32 v24, 4, v1
    buffer_store_dwordx4 v[8:11], v16, {s(sWS,4)}, {s(sT0)} offen sc1
    {"s_setprio 0" if RPRIO else ""}
    v_and_b32 {v(vTagB)}, 0xff, {v(vTagB)}
    s_add_u32 {s(sTAG)}, {s(sTAG)}, 1
    s_lshl3_add_u32 {s(sT0)}, {s(sB)}, {s(sW)}
    s_lshl_b32 {s(sT0)}, {s(sT0)}, 11
    s_add_u32 {s(sT0)}, {s(sT0)}, {SLOT0 - 8*2048}
    """)
    stamp("g1")
    A("s_waitcnt vmcnt(0)")
    consts(20, 21)
    slotconsts()
    A(f"""
    {"" if EARLY else "s_barrier"}
    v_mov_b32 v27, 3
    s_movk_i32 {s(sT0+2)}, 0xfe
    s_and_b32 {s(sPO)}, s2, 7
    s_lshl_b32 {s(sPO)}, {s(sPO)}, 10
    buffer_load_dwordx4 v[8:11], v24, {s(sWS,4)}, {s(sT0)} offen sc1
    buffer_load_dwordx4 v[12:15], v24, {s(sWS,4)}, {s(sT0)} offen offset:1024 sc1
    s_add_u32 {s(sPO)}, {s(sPO)}, {FLAG0}
    {"s_setprio 2" if RPRIO else ""}
    {"s_barrier" if EARLY else ""}
    """)
    stamp("b2")
    A(f"""
    L_slotchk:
    s_waitcnt vmcnt(0)
    v_cmp_ne_u32_sdwa vcc, {v(vTagB)}, v11 src0_sel:DWORD src1_sel:BYTE_3
    v_cmp_ne_u32_sdwa {s(sM,2)}, {v(vTagB)}, v15 src0_sel:DWORD src1_sel:BYTE_3
    s_or_b64 vcc, vcc, {s(sM,2)}
    s_cbranch_scc1 L_slotretry
    L_slotok:
    """)
    stamp("slot")
    def ins_a(u, p, ad, mk):
        d = 8 + 4*u
        A(f"v_cmp_gt_u32_sdwa {s(mk,2)}, {s(sT0+2)}, {v(d+3)} src0_sel:DWORD src1_sel:BYTE_{p}")
        A(f"v_lshlrev_b32_sdwa {v(ad)}, v27, {v(d+3)} dst_sel:DWORD dst_unused:UNUSED_PAD src0_sel:DWORD src1_sel:BYTE_{p}")
        if CLS:
            A(f"v_bfe_u32 v25, {v(d+p)}, 7, 1")
        else:
            A(f"v_mov_b32 v25, 1")
        A(f"v_lshl_add_u32 {v(ad)}, v25, 2, {v(ad)}")
        A(f"v_lshl_add_u32 v25, v25, 3, -4")
        A(f"s_mov_b64 exec, {s(mk,2)}")
        A(f"ds_add_rtn_u32 {v(ad)}, {v(ad)}, v25 offset:{CNT2}")
        A("s_mov_b64 exec, -1")
    def ins_w(u, p, ad, mk):
        A(f"s_mov_b64 exec, {s(mk,2)}")
        A(f"ds_write_b32 {v(ad)}, {v(8+4*u+p)}")
    for p in range(2):
        for u in range(2):
            ins_a(u, p, 16+2*p+u, sM+2*(2*p+u))
    A(f"""
    v_and_b32 v20, v11, v15
    v_cmp_ge_u32_sdwa vcc, {s(sT0+2)}, v20 src0_sel:DWORD src1_sel:BYTE_2
    s_waitcnt lgkmcnt(0)
    """)
    for p in range(2):
        for u in range(2):
            ins_w(u, p, 16+2*p+u, sM+2*(2*p+u))
    A(f"""
    s_mov_b64 exec, -1
    s_cbranch_vccnz L_third
    L_nothird:
    {"s_setprio 0" if RPRIO else ""}
    L_b4:
    """)
    def batch_pre():
        A(f"""
        s_lshl_b32 {s(sT0)}, {s(sBA)}, 4
        v_add_u32 {v(vOa)}, {s(sT0)}, {v(vG4)}
        v_add_u32 {v(vOa+1)}, {s(sT0)}, {v(vG4e)}
        """)
    def batch_pre2():
        for k in range(P):
            A(f"v_mov_b32 {v(slot(k)+3)}, {v(vP0+1)}")
        A(f"""
        v_mov_b32 {v(vD)}, 1.0
        v_mov_b32 {v(vD+1)}, 1.0
        v_mov_b64 {v(vD+2,2)}, {v(vD,2)}
        """)
    A(f"""
    s_cmp_lg_u32 {s(sW)}, 0
    s_waitcnt lgkmcnt(0)
    s_barrier
    """)
    stamp("b4")
    if DIAG: A(f"s_cmp_lg_u32 {s(sW)}, 0")
    A(f"""
    s_cbranch_scc1 L_nosort
    v_lshlrev_b32 v2, 3, v1
    ds_read_b64 v[8:9], v2 offset:{CNT2}
    ds_read_b64 v[10:11], v2 offset:{CNT2+512}
    v_mov_b32 v14, 0
    ds_read_b32 v14, v14 offset:{FLAG}
    v_lshlrev_b32 v2, 2, v1
    v_mov_b32 v24, 1
    v_add_u32 v25, 64, v1
    s_waitcnt lgkmcnt(1)
    v_sub_u32 v12, v8, v9
    v_sub_u32 v13, v10, v11
    v_add_u32 v12, 256, v12
    v_add_u32 v13, 256, v13
    v_max_i32 v12, 0, v12
    v_max_i32 v13, 0, v13
    ds_add_rtn_u32 v32, v12, v24 offset:{HIST}
    s_mov_b64 exec, 0xffff
    ds_add_rtn_u32 v33, v13, v24 offset:{HIST}
    s_mov_b64 exec, -1
    ds_read_b32 v35, v2 offset:{HIST}
    v_lshl_or_b32 v9, v12, 8, v1
    v_lshl_or_b32 v11, v13, 8, v25
    v_lshl_or_b32 v8, v8, 14, v9
    v_lshl_or_b32 v10, v10, 14, v11
    s_waitcnt lgkmcnt(0)
    v_add_u32_dpp v34, v35, v35 row_shr:1 row_mask:0xf bank_mask:0xf bound_ctrl:1
    s_nop 1
    v_add_u32_dpp v34, v34, v34 row_shr:2 row_mask:0xf bank_mask:0xf bound_ctrl:1
    s_nop 1
    v_add_u32_dpp v34, v34, v34 row_shr:4 row_mask:0xf bank_mask:0xf bound_ctrl:1
    s_nop 1
    v_add_u32_dpp v34, v34, v34 row_shr:8 row_mask:0xf bank_mask:0xf bound_ctrl:1
    s_nop 1
    v_add_u32_dpp v34, v34, v34 row_bcast:15 row_mask:0xa bank_mask:0xf
    s_nop 1
    v_add_u32_dpp v34, v34, v34 row_bcast:31 row_mask:0xc bank_mask:0xf
    v_sub_u32 v34, v34, v35
    ds_bpermute_b32 v12, v12, v34
    ds_bpermute_b32 v13, v13, v34
    v_readlane_b32 {s(sT0)}, v34, {63-NCAP}
    v_readfirstlane_b32 {s(sT0+1)}, v14
    s_or_b32 {s(sT0)}, {s(sT0)}, {s(sT0+1)}
    s_cselect_b32 {s(sT0)}, 0x80, 0
    v_or_b32 v8, {s(sT0)}, v8
    v_or_b32 v10, {s(sT0)}, v10
    s_waitcnt lgkmcnt(0)
    v_add_lshl_u32 v12, v12, v32, 2
    v_add_lshl_u32 v13, v13, v33, 2
    ds_write_b32 v12, v8 offset:{ORDER}
    s_mov_b64 exec, 0xffff
    ds_write_b32 v13, v10 offset:{ORDER}
    s_mov_b64 exec, -1
    s_waitcnt lgkmcnt(0)
    s_branch L_pr0
    L_nosort:
    s_cmp_lg_u32 {s(sW)}, 15
    s_cbranch_scc1 L_nopoll0
    v_lshlrev_b32 v2, 4, v1
    buffer_load_dwordx4 {v(vEx,4)}, v2, {s(sWS,4)}, {s(sPO)} offen sc1
    L_nopoll0:
    """)
    if PF1 or PF2:
        A(f"""
        s_lshl4_add_u32 {s(sT0+2)}, {s(sJ)}, {s(sW)}
        s_mul_i32 {s(sT0+2)}, {s(sT0+2)}, 20
        v_add_u32 v2, {s(sT0+2)}, v1
        v_and_b32 v3, 0xffffff00, v2
        v_add_lshl_u32 v127, v2, v3, 7
        v_add_u32 v127, 32768, v127
        s_mov_b32 s74, {((1 << (PF1+PF2)) - 1) & ~((1 << PF1) - 1)}
        s_mov_b32 s75, 0
        """)
    if NPF:
        A(f"""
        s_sub_u32 {s(sT0+2)}, {s(sW)}, 1
        s_cmp_ge_u32 {s(sT0+2)}, 8
        s_cbranch_scc1 L_nopf
        s_lshl3_add_u32 {s(sT0+2)}, {s(sJ)}, {s(sT0+2)}
        s_mul_i32 {s(sT0+2)}, {s(sT0+2)}, 40
        v_add_u32 v2, {s(sT0+2)}, v1
        v_and_b32 v3, 0xffffff00, v2
        v_add_lshl_u32 v2, v2, v3, 7
        s_mov_b32 exec_lo, {((1 << NPF) - 1) & 0xffffffff}
        s_mov_b32 exec_hi, {((1 << NPF) - 1) >> 32}
        buffer_load_dword {v(vDum)}, v2, {s(sWS,4)}, {s(sSL)} offen sc1
        s_mov_b64 exec, -1
        L_nopf:
        """)
    LO = 4
    if PRIO == 3:
        A(f"""
        s_cmp_ge_u32 {s(sW)}, 12
        s_cbranch_scc0 L_pr0
        s_setprio 3
        """)
    A("L_pr0:")
    stamp("sort")
    A(f"""
    s_barrier
    L_batch:
    ds_read_b32 {v(vNode)}, {v(vOa)} offset:{ORDER}
    ds_read_u16 {v(vL+1)}, {v(vOa+1)} offset:{ORDER+2}
    """)
    batch_pre2()
    A(f"""
    s_waitcnt lgkmcnt(0)
    v_lshrrev_b32 {v(vL)}, 16, {v(vNode)}
    v_lshlrev_b32 {v(vL)}, 2, {v(vL)}
    v_readfirstlane_b32 {s(sTR)}, {v(vNode)}
    """)
    for k in range(P):
        A(f"ds_read_u16 {v(slot(k)+2)}, {v(vL)} offset:{LO+4*k}")
    A(f"""
    s_cmp_ge_u32 {s(sBA)}, 16
    s_cbranch_scc1 L_go
    s_cmp_lg_u32 {s(sW)}, 15
    s_cbranch_scc1 L_b5
    v_lshlrev_b32 v2, 4, v1
    s_branch L_poll1
    L_poll:
    buffer_load_dwordx4 {v(vEx,4)}, v2, {s(sWS,4)}, {s(sPO)} offen sc1
    s_add_u32 {s(sRT)}, {s(sRT)}, 1
    s_cmp_ge_u32 {s(sRT)}, {SPIN}
    s_cbranch_scc1 L_pollok
    L_poll1:
    s_waitcnt vmcnt(0)
    v_xor_b32 {v(vEx)}, {s(sTAG)}, {v(vEx)}
    v_xor_b32 {v(vEx+1)}, {s(sTAG)}, {v(vEx+1)}
    v_xor_b32 {v(vEx+2)}, {s(sTAG)}, {v(vEx+2)}
    v_xor_b32 {v(vEx+3)}, {s(sTAG)}, {v(vEx+3)}
    v_or3_b32 {v(vEx)}, {v(vEx)}, {v(vEx+1)}, {v(vEx+2)}
    v_or_b32 {v(vEx)}, {v(vEx)}, {v(vEx+3)}
    v_cmp_ne_u32 vcc, 0, {v(vEx)}
    s_cbranch_vccnz L_poll
    L_pollok:
    s_cmp_lg_u32 s2, 0
    s_cbranch_scc1 L_b5
    s_mov_b64 exec, 1
    v_mov_b32 v2, {EPOCH}
    v_mov_b32 v3, {s(sTAG)}
    buffer_store_dword v3, v2, {s(sWS,4)}, 0 offen sc1
    s_mov_b64 exec, -1
    L_b5:
    s_barrier
    """)
    stamp("b5")
    if DIAG:
        A(f"s_lshl_b32 {s(sST+18)}, {s(sRT+1)}, 16")
        A(f"s_or_b32 {s(sST+18)}, {s(sST+18)}, {s(sRT)}")
        A(f"s_or_b32 {s(sST+18)}, {s(sST+18)}, 0x80000000")
    A(f"""
    L_go:
    s_waitcnt lgkmcnt(0)
    """)
    for k in range(P):
        if "L" in EXP:
            A(f"v_mov_b64 {v(slot(k)+2,2)}, 0")
            A(f"v_mov_b64 {v(slot(k)+4,2)}, 0")
            continue
        A(f"buffer_load_dwordx4 {v(slot(k)+2,4)}, {v(slot(k)+2,2)}, {s(sTAB,4)}, 0 idxen offen {GSC}")
    A(f"""
    v_lshl_add_u32 {v(vL+1)}, {v(vL+1)}, 2, {v(vOob)}
    v_and_b32 v2, 0x7f, {v(vNode)}
    v_mul_u32_u24 v3, {XAS}, v2
    v_add_u32 v3, v3, {v(vP0+1)}
    ds_read2_b32 {v(vAt+4*((-1)%NA),2)}, {v(vL+1)} offset0:0 offset1:1
    ds_read2_b32 {v(vAt,2)}, {v(vL+1)} offset0:2 offset1:3
    ds_read_b128 {v(vXA,4)}, v3 offset:{XAU}
    ds_read_b128 {v(vN,4)}, v3 offset:{XAU+256}
    ds_read_u16 {v(vP0)}, {v(vL)} offset:{LO+4*P}
    ds_read_u16 {v(vP0+2)}, {v(vL)} offset:{LO+4*P+4}
    v_lshrrev_b32 {v(vO)}, 1, {v(vP0+1)}
    v_lshl_or_b32 {v(vO)}, v2, 15, {v(vO)}
    s_bitcmp1_b32 {s(sTR)}, 7
    s_cbranch_scc1 L_scan
    s_bfe_u32 {s(sTR)}, {s(sTR)}, 0x6000a
    s_min_u32 {s(sTR)}, {s(sTR)}, {63-P}
    s_sub_u32 {s(sTR)}, {63-P}, {s(sTR)}
    s_lshr_b32 {s(sCNT)}, {s(sTR)}, 1
    """)
    if PRIO == 3:
        A(f"""
        s_sub_i32 {s(sTH)}, {TH[1]}, {s(sEX)}
        s_setprio 3
        s_cmp_gt_i32 {s(sCNT)}, {s(sTH)}
        s_cbranch_scc1 L_lad
        s_sub_i32 {s(sTH)}, {TH[0]}, {s(sEX)}
        s_setprio 2
        s_cmp_gt_i32 {s(sCNT)}, {s(sTH)}
        s_cbranch_scc1 L_lad
        s_movk_i32 {s(sTH)}, -100
        s_setprio 1
        L_lad:
        """)
    def T(st):
        A(f"v_pk_fma_f32 {v(vT,2)}, {v(vEe,2)}, {v(vC,2)}, {v(vXA,2)} op_sel_hi:[0,1,1]")
        A(f"v_pk_fma_f32 {v(vT+2,2)}, {v(vEe,2)}, {v(vC+2,2)}, {v(vXA+2,2)} op_sel_hi:[0,1,1]")
    def M1(st):
        a = vAt + 4*(((st-1)//2) % NA)
        A(f"v_mfma_f32_16x16x32_bf16 {v(vT+4*(st%2),4)}, {v(a,4)}, {v(slot(st),4)}, {v(vXA,4)}")
    def M2(st):
        A(f"v_mfma_f32_4x4x4_16b_bf16 {v(vMm+4*(st%2),4)}, {v(vI,2)}, {v(slot(st)+4,2)}, 0")
    def Ld(st):
        if "L" in EXP: return
        A(f"buffer_load_dwordx4 {v(slot(st)+2,4)}, {v(vP0+2*(st%2),2)}, {s(sTAB,4)}, 0 idxen offen {GSC}")
    A(f"s_waitcnt vmcnt({P-1}) lgkmcnt(0)")
    stamp("first")
    M1(0); M2(0)
    A(f"s_sub_u32 {s(sCNT)}, {s(sCNT)}, 1")
    Ld(P)
    A(f"ds_read_u16 {v(vP0)}, {v(vL)} offset:{LO+4*(P+2)}")
    A("s_nop 1")
    A("s_cbranch_scc1 L_drain0")
    if PF1:
        A(f"""
        s_cmp_ge_u32 {s(sBA)}, 16
        s_cbranch_scc1 L_loop
        s_mov_b64 exec, {(1 << PF1) - 1}
        buffer_load_dword {v(vDum)}, v127, {s(sWS,4)}, {s(sSL)} offen sc1
        s_mov_b64 exec, -1
        """)
    def body(k, drain):
        n0 = len(A.lines)
        body0(k, drain)
        new = A.lines[n0:]
        if "V" in EXP: new = [l for l in new if not l.strip().startswith(("v_pk", "v_exp", "v_mfma"))]
        A.lines[n0:] = new
    def body0(k, drain):
        z = vT + 4*(k % 2); m = vMm + 4*(k % 2)
        last = drain == P
        if drain is None:
            A(f"s_waitcnt vmcnt({P-1}) lgkmcnt({1 + k % 2})")
        elif not last:
            A(f"s_waitcnt vmcnt({P-1-drain})" + (" lgkmcnt(0)" if k % 2 == 0 else ""))
        if not last: M1(k+1)
        A(f"v_exp_f32 {v(vEx)}, {v(z)}")
        A(f"v_exp_f32 {v(vEx+1)}, {v(z+1)}")
        if not last: M2(k+1)
        A(f"v_exp_f32 {v(vEx+2)}, {v(z+2)}")
        A(f"v_exp_f32 {v(vEx+3)}, {v(z+3)}")
        if drain is None:
            Ld(k+1+P)
            A(f"ds_read_u16 {v(vP0+2*((k+1)%2))}, {v(vL)} offset:{LO+4*(k+3+P)}")
        if k % 2 == 0 and (drain is None or drain < P-2):
            A(f"ds_read2_b32 {v(vAt+4*((k//2+1)%NA),2)}, {v(vL+1)} offset0:{k+4} offset1:{k+5}")
        for h in range(2):
            A(f"v_pk_fma_f32 {v(vN1+2*h,2)}, {v(m+2*h,2)}, {v(vD+2*h,2)}, {v(vN+2*h,2)}")
        for h in range(2):
            A(f"v_pk_fma_f32 {v(vD+2*h,2)}, {v(vD+2*h,2)}, {v(vEx+2*h,2)}, {v(vD+2*h,2)}")
        for h in range(2):
            A(f"v_pk_fma_f32 {v(vN+2*h,2)}, {v(vN+2*h,2)}, {v(vEx+2*h,2)}, {v(vN1+2*h,2)}")
    assert P % 2 == 0
    A("L_loop:")
    for k in range(P):
        body(k, None)
        if k % 2 == 1:
            if k == P-1:
                A(f"v_lshl_add_u64 {v(vL,2)}, {v(vL,2)}, 0, {s(sINC,2)}")
                if PF2:
                    A(f"""
                    s_and_b64 exec, s[74:75], s[74:75]
                    s_cbranch_scc0 L_nopf2
                    buffer_load_dword {v(vDum)}, v127, {s(sWS,4)}, {s(sSL)} offen sc1
                    s_mov_b32 s74, 0
                    L_nopf2:
                    s_mov_b64 exec, -1
                    """)
                if PRIO == 3:
                    A(f"s_cmp_le_i32 {s(sCNT)}, {s(sTH)}")
                    A("s_cbranch_scc1 L_lower")
                    A("L_lowered:")
            A(f"s_sub_u32 {s(sCNT)}, {s(sCNT)}, 1")
            A(f"s_cbranch_scc1 L_drain{k+1}" if k < P-1 else "s_cbranch_scc0 L_loop")
    for ph in range(0, P, 2):
        A(f"L_drain{ph}:")
        if PRIO == 3:
            A(f"""
            s_cmp_lg_u32 {s(sEX)}, 0
            s_cbranch_scc1 L_keep{ph}
            s_setprio 0
            L_keep{ph}:
            """)
        A(f"s_bitcmp0_b32 {s(sTR)}, 0")
        for i in range(P+1):
            if i == P: A("s_cbranch_scc1 L_loop_done")
            body(ph+i, i)
        if ph < P-2: A("s_branch L_loop_done")
    A(f"""
    L_loop_done:
    v_rcp_f32 {v(vEx)}, {v(vD)}
    v_rcp_f32 {v(vEx+1)}, {v(vD+1)}
    v_rcp_f32 {v(vEx+2)}, {v(vD+2)}
    v_rcp_f32 {v(vEx+3)}, {v(vD+3)}
    v_pk_add_f32 {v(vD,2)}, {v(vD,2)}, {v(vD+2,2)}
    v_add_f32 v2, |{v(vN)}|, |{v(vN+1)}|
    v_add_f32 v3, |{v(vN+2)}|, |{v(vN+3)}|
    v_pk_mul_f32 {v(vN,2)}, {v(vN,2)}, {v(vEx,2)}
    v_pk_add_f32 v[2:3], v[2:3], {v(vD,2)}
    v_pk_mul_f32 {v(vN+2,2)}, {v(vN+2,2)}, {v(vEx+2,2)}
    v_add_f32 v2, v2, v3
    v_cmp_ngt_f32 vcc, 0x7b800000, v2
    s_cbranch_vccnz L_safe
    L_silu:
    v_pk_mul_f32 {v(vT,2)}, {v(vN,2)}, {s(sL2E,2)}
    v_pk_mul_f32 {v(vT+2,2)}, {v(vN+2,2)}, {s(sL2E,2)}
    v_exp_f32 {v(vEx)}, {v(vT)}
    v_exp_f32 {v(vEx+1)}, {v(vT+1)}
    v_exp_f32 {v(vEx+2)}, {v(vT+2)}
    v_exp_f32 {v(vEx+3)}, {v(vT+3)}
    v_pk_add_f32 {v(vEx,2)}, {v(vEx,2)}, 1.0 op_sel_hi:[1,0]
    v_pk_add_f32 {v(vEx+2,2)}, {v(vEx+2,2)}, 1.0 op_sel_hi:[1,0]
    v_rcp_f32 {v(vEx)}, {v(vEx)}
    v_rcp_f32 {v(vEx+1)}, {v(vEx+1)}
    v_rcp_f32 {v(vEx+2)}, {v(vEx+2)}
    v_rcp_f32 {v(vEx+3)}, {v(vEx+3)}
    v_pk_mul_f32 {v(vN,2)}, {v(vN,2)}, {v(vEx,2)}
    v_pk_mul_f32 {v(vN+2,2)}, {v(vN+2,2)}, {v(vEx+2,2)}
    v_cvt_pk_bf16_f32 {v(vN1)}, {v(vN)}, {v(vN+1)}
    v_cvt_pk_bf16_f32 {v(vN1+1)}, {v(vN+2)}, {v(vN+3)}
    s_sub_u32 {s(sT0)}, {s(sBA)}, 12
    buffer_store_dwordx2 {v(vN1,2)}, {v(vO)}, {s(sOUT,4)}, {s(sOO)} offen {OUTSC}
    s_add_u32 {s(sBA)}, {s(sBA)}, 4
    s_cmp_lt_u32 {s(sT0)}, 4
    s_cbranch_scc0 L_fin
    s_mov_b32 {s(sEX)}, 0
    v_add_u32 {v(vOa)}, 64, {v(vOa)}
    v_add_u32 {v(vOa+1)}, 64, {v(vOa+1)}
    s_branch L_batch
    L_fin:
    """)
    if DIAG:
        if "hw" in STS: A(f"s_getreg_b32 {s(sST+2*(STS.index('hw')+1))}, hwreg(HW_REG_HW_ID)")
        stamp("end")
        A("s_waitcnt vmcnt(0)")
        stamp("drain")
        dump_stamps()
    A("L_end:")
    A("s_endpgm")
    A(f"""
    L_lower:
    s_sub_i32 {s(sT0)}, {TH[0]}, {s(sEX)}
    s_cmp_eq_i32 {s(sT0)}, {s(sTH)}
    s_cselect_b32 {s(sTH)}, -100, {s(sT0)}
    s_setprio 2
    s_cbranch_scc0 {"L_lowered" if PRIO == 3 else "L_end"}
    s_setprio 1
    s_branch {"L_lowered" if PRIO == 3 else "L_end"}
    L_slotretry:
    buffer_load_dwordx4 v[8:11], v24, {s(sWS,4)}, {s(sT0)} offen sc1
    buffer_load_dwordx4 v[12:15], v24, {s(sWS,4)}, {s(sT0)} offen offset:1024 sc1
    s_add_u32 {s(sRT+1)}, {s(sRT+1)}, 1
    s_cmp_lt_u32 {s(sRT+1)}, {SPIN}
    s_cbranch_scc1 L_slotchk
    s_waitcnt vmcnt(0)
    v_mov_b32 v11, -1
    v_mov_b32 v15, -1
    s_branch L_slotok
    L_third:
    """)
    for u in range(2): ins_a(u, 2, 16+u, sM+2*u)
    A(f"""
    v_cmp_eq_u32_sdwa vcc, {s(sT0+2)}, v11 src0_sel:DWORD src1_sel:BYTE_2
    v_cmp_eq_u32_sdwa {s(sM+4,2)}, {s(sT0+2)}, v15 src0_sel:DWORD src1_sel:BYTE_2
    v_mov_b32 v20, 0
    s_waitcnt lgkmcnt(0)
    """)
    for u in range(2): ins_w(u, 2, 16+u, sM+2*u)
    A(f"""
    s_or_b64 exec, vcc, {s(sM+4,2)}
    ds_write_b32 v20, v27 offset:{FLAG}
    s_mov_b64 exec, -1
    s_branch L_nothird
    L_code_end:
    L_ovf:
    v_mov_b32 v11, 0xfefefe
    v_mov_b32 v12, 0
    ds_write_b32 v12, v11 offset:{FLAG}
    s_branch L_noovf
    """)
    def safe_step():
        d = vDAT + 2
        A(f"buffer_load_dwordx4 {v(d,4)}, {v(vP0,2)}, {s(sTAB,4)}, 0 idxen offen sc1")
        T(0)
        A(f"""
        s_waitcnt vmcnt(0)
        v_lshlrev_b32 {v(vN1)}, 16, {v(d)}
        v_and_b32 {v(vN1+1)}, 0xffff0000, {v(d)}
        v_lshlrev_b32 {v(vN1+2)}, 16, {v(d+1)}
        v_and_b32 {v(vN1+3)}, 0xffff0000, {v(d+1)}
        v_pk_add_f32 {v(vT,2)}, {v(vT,2)}, {v(vN1,2)}
        v_pk_add_f32 {v(vT+2,2)}, {v(vT+2,2)}, {v(vN1+2,2)}
        v_lshlrev_b32 {v(vN1)}, 16, {v(d+2)}
        v_and_b32 {v(vN1+1)}, 0xffff0000, {v(d+2)}
        v_lshlrev_b32 {v(vN1+2)}, 16, {v(d+3)}
        v_and_b32 {v(vN1+3)}, 0xffff0000, {v(d+3)}
        """)
        for k in range(4): A(f"v_exp_f32 {v(vEx+k)}, {v(vT+k)}")
        A(f"v_pk_add_f32 {v(vEx,2)}, {v(vEx,2)}, 1.0 op_sel_hi:[1,0]")
        A(f"v_pk_add_f32 {v(vEx+2,2)}, {v(vEx+2,2)}, 1.0 op_sel_hi:[1,0]")
        for k in range(4): A(f"v_rcp_f32 {v(vEx+k)}, {v(vEx+k)}")
        A(f"v_pk_fma_f32 {v(vN,2)}, {v(vN1,2)}, {v(vEx,2)}, {v(vN,2)}")
        A(f"v_pk_fma_f32 {v(vN+2,2)}, {v(vN1+2,2)}, {v(vEx+2,2)}, {v(vN+2,2)}")
    A(f"""
    L_safe:
    v_and_b32 v2, 0x7f, {v(vNode)}
    v_mul_u32_u24 v2, {XAS}, v2
    v_add_u32 v2, v2, {v(vP0+1)}
    ds_read_b128 {v(vN,4)}, v2 offset:{XAU+256}
    ds_read_b128 {v(vC,4)}, {v(vP0+1)} offset:{CVEC}
    v_lshrrev_b32 {v(vL)}, 16, {v(vNode)}
    v_lshlrev_b32 {v(vL)}, 2, {v(vL)}
    s_add_u32 {s(sT0)}, {s(sTR)}, {P}
    L_safe_loop:
    ds_read_b32 v2, {v(vL)} offset:{LO}
    v_add_u32 {v(vL)}, 4, {v(vL)}
    s_waitcnt lgkmcnt(0)
    v_and_b32 {v(vP0)}, 0xffff, v2
    v_and_b32 {v(vEe)}, 0xffff0000, v2
    """)
    safe_step()
    A(f"""
    s_sub_u32 {s(sT0)}, {s(sT0)}, 1
    s_cmp_lg_u32 {s(sT0)}, 0
    s_cbranch_scc1 L_safe_loop
    s_branch L_silu
    L_scan:
    ds_read_b128 {v(vC,4)}, {v(vP0+1)} offset:{CVEC}
    s_waitcnt lgkmcnt(0)
    v_and_b32 v108, 0x7f, {v(vNode)}
    v_lshlrev_b32 v108, 7, v108
    v_add_u32 v108, {s(sB)}, v108
    v_lshlrev_b32 v104, 2, v1
    v_lshlrev_b32 v105, 1, v1
    s_mov_b32 {s(sT0)}, 0
    L_scan_outer:
    global_load_dword v106, v104, {s(sDST,2)}
    global_load_dword v107, v104, {s(sSRC,2)}
    global_load_ushort v109, v105, {s(sE,2)}
    v_add_u32 v104, 256, v104
    v_add_u32 v105, 128, v105
    s_waitcnt vmcnt(0)
    v_and_b32 v2, 127, v106
    v_cmp_eq_u32 {s(sM,2)}, {s(sB)}, v2
    v_lshlrev_b32 v109, 16, v109
    L_scan_inner:
    s_cmp_eq_u64 {s(sM,2)}, 0
    s_cbranch_scc1 L_scan_next
    s_ff1_i32_b64 {s(sT0+1)}, {s(sM,2)}
    s_bitset0_b64 {s(sM,2)}, {s(sT0+1)}
    v_readlane_b32 {s(sT0+2)}, v106, {s(sT0+1)}
    v_readlane_b32 {s(sT0+3)}, v107, {s(sT0+1)}
    v_readlane_b32 {s(sT0+4)}, v109, {s(sT0+1)}
    s_nop 1
    v_cmp_eq_u32 vcc, {s(sT0+2)}, v108
    s_and_b64 exec, vcc, vcc
    s_cbranch_scc0 L_scan_skip
    v_mov_b32 {v(vP0)}, {s(sT0+3)}
    v_mov_b32 {v(vEe)}, {s(sT0+4)}
    """)
    safe_step()
    A(f"""
    L_scan_skip:
    s_mov_b64 exec, -1
    s_branch L_scan_inner
    L_scan_next:
    s_add_u32 {s(sT0)}, {s(sT0)}, 1
    s_cmp_lt_u32 {s(sT0)}, {E//64}
    s_cbranch_scc1 L_scan_outer
    s_branch L_silu
    """)

A('.amdgcn_target "amdgcn-amd-amdhsa--gfx950"')
A(".text")
A(f".globl {NAME}_kernel")
A(f".type {NAME}_kernel,@function")
kernel()
A('.section .rodata,"a"')
A(".p2align 6")
A(f".amdhsa_kernel {NAME}_kernel")
A(""".amdhsa_next_free_vgpr 128
.amdhsa_next_free_sgpr 102
.amdhsa_accum_offset 128
.amdhsa_group_segment_fixed_size 0
.amdhsa_kernarg_size 80
.amdhsa_user_sgpr_count 2
.amdhsa_user_sgpr_kernarg_segment_ptr 1
.amdhsa_system_sgpr_workgroup_id_x 1
.end_amdhsa_kernel""")
head = open("cdna_kernels/" + NAME + ".s.ref").read().split("\n")
head = [l for l in head if l.startswith(";") and "@launch" not in l and "launch geometry" not in l and "grid=ceil" not in l]
head.append(f"; @launch grid=(256,1,1) block=(1024,1,1) lds={LDSZ}")
open(sys.argv[1], "w").write("\n".join(head) + "\n" + A.text())
```

```python
import sys
from asmlib import Asm, v, s

NAME = "gather_scatter__edge_featured_mpnn_egc__graph"
N, E = 10000, 160000
opts = dict(a.split("=") for a in sys.argv[2:])
DIAG = int(opts.get("diag", 0))
STS = opts.get("st", "b1,g1,ack,slot,b4,b5,end,drain").split(",")
NPF = int(opts.get("npf", 8))
NR = int(opts.get("nr", 4))
TH = [int(x) for x in opts.get("th", "4,7,6").split(",")]
IDE = int(opts.get("ide", 1))
SG = int(opts.get("sg", 80))
EPL = int(opts.get("epl", 0))
DORD = opts.get("dord", "3|XBVXBVXBVXBVX.AUAUAUAU")

SLICE = 10240 * 256
SLOT0 = 0x500000
FLAG0 = 0x700000
FS, RS = 16, 128 * 16
EPOCH = 0x740000
WS_USED = EPOCH + 256
STAMP0 = 0x800000
SCAP, NCAP = 48, 48
LSTR, ISTR = 388, 392
NLOG2E = 0xBFB8AA3B
DUMMY = 0x3fff
SPIN = 30000
P = 4
BTL = [0,1,2,3, 7,6,5,4, 11,8,9,10, 15,14,13,12]
BT = sum(b << (4*i) for i, b in enumerate(BTL))

CNT2, HIST, ORDER, FLAG, CVEC, ONES = 64, 704, 960, 1280, 1536, 1792
WA = 2048
WU, WB, WV = WA + 16384, WA + 32768, WA + 49152
XL = WA + 65536
XAS, XAU = 528, WB
IMG = XL + 20480
LIST = IMG + 32*ISTR
LDSZ = 163840
CBASE = LDSZ - 512
assert XAU + 80*XAS <= IMG and LIST % 16 == 0 and LIST + 32768 + 12288 <= CBASE and 80*LSTR + 64 <= 32768

A = Asm()
C = A.c
sX, sE, sSRC, sDST, sU, sV, sG, sOUTP = 4, 6, 8, 10, 12, 14, 16, 18
sWS, sTAB, sOUT = 20, 24, 28
sW, sJ, sF, sB, sC, sQB, sTAG, sPO = 32, 33, 34, 35, 36, 37, 38, 39
sL2E, sF128, sB256, sT0 = 40, 42, 43, 44
sCNT, sPAR, sSL, sGO, sBA, sTR, sRO, sOO, sRT = 50, 51, 52, 53, 54, 55, 56, 57, 58
sM, sSEC, sPM, sSO, sPW, sINC, sEX, sTH, sST = 60, 69, 72, 74, 75, 76, 78, 79, 80
WF, XF, AC = 8, 40, 88
vXa, vWa, vSo, vXo = 4, 112, 113, 114
vG4, vI, vP0, vI16, vDum, vG4e, vOob, vTagB = 115, 116, 118, 122, 124, 125, 126, 127
vC, vXA, vN, vD, vL, vO, vNode, vEe = 4, 8, 12, 16, 20, 22, 23, 24
vT, vMm, vEx, vN1, vAt, vDAT, vOa = 28, 36, 44, 48, 52, 64, 110
vSl, vU, vPf = 113, 4, 22
def slot(st): return vDAT + 6*(st % P)

def stamp(name):
    if DIAG and name in STS:
        A(f"s_memrealtime {s(sST+2*(STS.index(name)+1),2)}")
        A("s_waitcnt lgkmcnt(0)")

def ids(early=False):
    if early != bool(IDE): return
    A(f"""
    s_lshr_b32 {s(sJ)}, s2, 3
    s_and_b32 {s(sF)}, s2, 1
    s_bfe_u32 {s(sB)}, s2, 0x20001
    s_lshl_b32 {s(sB)}, {s(sB)}, 5
    s_add_u32 {s(sB)}, {s(sB)}, {s(sJ)}
    s_lshl_b32 {s(sF128)}, {s(sF)}, 7
    s_lshl_b32 {s(sB256)}, {s(sB)}, 8
    """)

def epoch_load():
    A(f"s_load_dword {s(sTAG)}, {s(sWS,2)}, s3")

def common_scalars():
    A(f"""
    s_mov_b32 {s(sWS+2)}, {STAMP0 + 0x100000 if DIAG else WS_USED}
    s_mov_b32 {s(sWS+3)}, 0x20000
    s_mov_b32 {s(sL2E)}, {NLOG2E:#x}
    s_mov_b32 {s(sL2E+1)}, {NLOG2E:#x}
    s_and_b32 {s(sQB)}, {s(sJ)}, 3
    s_mul_i32 {s(sSL)}, {s(sF)}, {SLICE}
    v_and_b32 v1, 63, v0
    v_and_b32 v2, 15, v0
    """)

def rsetup():
    C("record sender: lane -> (bin pair, 16-B unit); v5/v25 image addresses, v24 slot offset, v6/v27/v4 capacity limits")
    A(f"""
    v_subrev_u32 v3, 512, v0
    v_mul_u32_u24 v4, 171, v3
    v_lshrrev_b32 v4, 12, v4
    v_mul_u32_u24 v26, 24, v4
    v_sub_u32 v26, v3, v26
    v_mul_u32_u24 v5, {2*ISTR}, v4
    v_add_u32 v5, {IMG}, v5
    v_lshrrev_b32 v6, 3, v26
    v_and_b32 v7, 7, v26
    v_cmp_eq_u32 vcc, 1, v6
    v_mul_u32_u24 v6, {ISTR//2}, v6
    v_lshl_add_u32 v6, v7, 3, v6
    v_mad_i32_i24 v25, v7, -8, v5
    v_add_u32 v25, {ISTR + 8*31}, v25
    v_add_u32 v5, v5, v6
    v_subrev_u32 v6, {ISTR//2 - 192}, v5
    v_cndmask_b32 v5, v5, v6, vcc
    v_mov_b32 v6, {ONES}
    v_cndmask_b32 v25, v6, v25, vcc
    s_movk_i32 {s(sT0+1)}, {64*384 - 384}
    v_lshlrev_b32 v24, 4, v3
    v_mad_u32_u24 v24, v4, {s(sT0+1)}, v24
    v_lshlrev_b32 v7, 3, v2
    v_add_u32 v7, {CBASE}, v7
    v_mul_u32_u24 v6, {2*ISTR}, v2
    v_add_u32 v6, {IMG + 8*SCAP}, v6
    v_add_u32 v27, {ISTR}, v6
    v_add_u32 v4, v6, v27
    v_subrev_u32 v4, {8*24}, v4
    s_mov_b32 {s(sPM)}, 0x0c0c0400
    s_mov_b32 {s(sPM+1)}, 0x04000c0c
    s_mul_i32 {s(sRO)}, {s(sQB)}, {16*64*384}
    s_mul_i32 {s(sT0+1)}, {s(sC)}, 384
    s_add_u32 {s(sRO)}, {s(sRO)}, {s(sT0+1)}
    s_add_u32 {s(sRO)}, {s(sRO)}, {SLOT0}
    """)

def tagconsts():
    C("expected unit tag, flag value (epoch + 1), slot window of this block")
    A(f"""
    s_and_b32 {s(sPAR)}, {s(sB)}, 1
    s_mul_i32 {s(sSO)}, {s(sPAR)}, {8*37}
    s_add_u32 {s(sSO)}, {s(sSO)}, {s(sTAG)}
    v_mad_u32_u24 {v(vTagB)}, v2, 37, {s(sSO)}
    s_add_u32 {s(sTAG)}, {s(sTAG)}, 1
    s_lshr_b32 {s(sSO)}, {s(sB)}, 1
    s_mul_i32 {s(sSO)}, {s(sSO)}, 192
    s_add_u32 {s(sSO)}, {s(sSO)}, {s(sPAR)}
    s_lshl_b32 {s(sSO)}, {s(sSO)}, 7
    v_and_b32 {v(vTagB)}, 0xff, {v(vTagB)}
    s_add_u32 {s(sSO)}, {s(sSO)}, {SLOT0}
    s_mul_i32 {s(sPAR)}, {s(sPAR)}, 0x808080
    """)

def slotaddr():
    A(f"""
    v_and_b32 {v(vSl)}, 0x3f0, v0
    v_lshlrev_b32 {v(vSl)}, 3, {v(vSl)}
    v_lshl_add_u32 {v(vSl)}, v0, 4, {v(vSl)}
    """)

def consts(t0, t1):
    C("edge-loop constants: selection matrices, lane offsets, batch number, descriptors")
    A(f"""
    v_and_b32 {v(t0)}, 1, v1
    v_lshlrev_b32 {v(t0)}, 4, {v(t0)}
    v_mov_b32 {v(t1)}, 0x3f80
    v_lshlrev_b32 {v(t1)}, {v(t0)}, {v(t1)}
    v_and_b32 {v(t0)}, 2, v1
    v_cmp_eq_u32 vcc, 0, {v(t0)}
    v_lshlrev_b32 {v(vP0+1)}, 4, v2
    v_lshrrev_b32 {v(vG4)}, 4, v1
    v_cndmask_b32 {v(vI)}, 0, {v(t1)}, vcc
    v_sub_u32 {v(vI+1)}, {v(t1)}, {v(vI)}
    v_lshlrev_b32 {v(vG4)}, 2, {v(vG4)}
    v_mov_b32 {v(vP0+3)}, {v(vP0+1)}
    v_and_b32 {v(vG4e)}, 12, v1
    v_cmp_eq_u32 vcc, {v(vG4e)}, {v(vG4)}
    v_and_b32 {v(t0)}, 3, v1
    v_lshlrev_b32 {v(t0)}, 2, {v(t0)}
    v_cndmask_b32 {v(vI16)}, 0, {v(vI)}, vcc
    v_cndmask_b32 {v(vI16+1)}, 0, {v(vI+1)}, vcc
    v_cmp_ne_u32 vcc, {v(t0)}, {v(vG4)}
    v_mov_b32 {v(t1)}, 0x100000
    s_mov_b32 {s(sINC)}, {4*P}
    s_mov_b32 {s(sINC+1)}, {4*P}
    v_cndmask_b32 {v(vOob)}, 0, {v(t1)}, vcc
    s_mov_b32 {s(sT0+2)}, {BT & 0xffffffff:#x}
    s_mov_b32 {s(sT0+3)}, {BT >> 32:#x}
    s_lshl_b32 {s(sBA)}, {s(sW)}, 2
    s_lshr_b64 {s(sT0+2,2)}, {s(sT0+2,2)}, {s(sBA)}
    s_and_b32 {s(sBA)}, {s(sT0+2)}, 15
    s_add_u32 {s(sOO)}, {s(sB256)}, {s(sF128)}
    s_add_u32 {s(sTAB)}, {s(sWS)}, {s(sSL)}
    s_addc_u32 {s(sTAB+1)}, {s(sWS+1)}, 0x1000000
    s_mov_b32 {s(sTAB+2)}, {N}
    s_mov_b32 {s(sTAB+3)}, 0x20000
    s_mov_b64 {s(sOUT,2)}, {s(sOUTP,2)}
    s_mov_b32 {s(sOUT+2)}, {N*256}
    s_mov_b32 {s(sOUT+3)}, 0x20000
    s_mov_b64 {s(sRT,2)}, 0
    """)

def batch_init():
    for k in range(P):
        A(f"v_mov_b32 {v(slot(k)+3)}, {v(vP0+1)}")
    A(f"""
    v_mov_b32 {v(vD)}, 1.0
    v_mov_b32 {v(vD+1)}, 1.0
    v_mov_b64 {v(vD+2,2)}, {v(vD,2)}
    """)

def lateconsts():
    C("per-slot MFMA constants (c as bf16 in the half that meets this step's e), sort and insert constants")
    A(f"""
    v_add_u32 v2, {v(vP0+1)}, {v(vG4)}
    ds_read_b32 v3, v2 offset:{CVEC}
    v_mov_b32 v2, 0
    v_mov_b64 {v(vAt+2,2)}, {v(vI16,2)}
    v_mov_b64 {v(vAt+6,2)}, {v(vI16,2)}
    """)
    for k in range(P):
        A(f"v_mov_b32 {v(slot(k)+(k%2))}, 0")
    A("s_waitcnt lgkmcnt(0)")
    A("v_cvt_pk_bf16_f32 v3, v2, v3")
    for k in range(P):
        A(f"v_mov_b32 {v(slot(k)+1-(k%2))}, v3")
    A(f"""
    s_lshl_b32 {s(sT0+3)}, {s(sBA)}, 4
    v_add_u32 {v(vOa)}, {s(sT0+3)}, {v(vG4)}
    v_add_u32 {v(vOa+1)}, {s(sT0+3)}, {v(vG4e)}
    s_cmp_ge_u32 {s(sW)}, 12
    s_cselect_b32 {s(sEX)}, {TH[2]}, 0
    """)
    batch_init()
    A(f"""
    v_mov_b32 v27, 3
    s_movk_i32 {s(sT0+2)}, 0x7e
    s_movk_i32 {s(sT0+4)}, 0xfe
    v_lshlrev_b32 v8, 3, v1
    v_lshlrev_b32 v9, 2, v1
    v_mov_b32 v10, 1
    v_add_u32 v11, 64, v1
    v_mov_b32 v14, 0
    s_lshl4_add_u32 {s(sT0+3)}, {s(sJ)}, {s(sW)}
    s_mul_i32 {s(sT0+3)}, {s(sT0+3)}, 20
    v_add_u32 v2, {s(sT0+3)}, v1
    v_and_b32 v3, 0xffffff00, v2
    v_add_lshl_u32 {v(vPf)}, v2, v3, 7
    """)

def kernel():
    A(".p2align 8")
    A(f"{NAME}_kernel:")
    A(f"""
    s_load_dwordx16 s[4:19], s[0:1], 0
    s_load_dwordx2 {s(sWS,2)}, s[0:1], 72
    v_lshrrev_b32 v1, 6, v0
    s_cmp_ge_u32 s2, 256
    s_cbranch_scc1 L_end
    """)
    if DIAG:
        for k in range(10):
            A(f"s_mov_b64 {s(sST+2*k,2)}, 0")
        A(f"s_memrealtime {s(sST,2)}")
    A(f"""
    v_readfirstlane_b32 {s(sW)}, v1
    v_lshlrev_b32 v2, 4, v0
    s_and_b32 {s(sT0)}, s2, 7
    s_lshr_b32 {s(sC)}, s2, 5
    s_lshl3_add_u32 {s(sC)}, {s(sT0)}, {s(sC)}
    s_mov_b32 s3, {EPOCH}
    """)
    ids(True)
    A(f"""
    s_cmp_ge_u32 {s(sW)}, 12
    s_cbranch_scc1 L_dmawave
    """)
    C("waves 0..11: mark the record image empty")
    A(f"""
    v_mov_b64 v[8:9], -1
    v_mov_b64 v[10:11], -1
    v_add_u32 v12, {IMG}, v2
    ds_write_b128 v12, v[8:11]
    s_cmp_ge_u32 {s(sW)}, 10
    s_cbranch_scc1 L_initwave
    s_cmp_lg_u32 {s(sW)}, 0
    s_cbranch_scc1 L_nocpf
    """)
    C("wave 0 reads the kernel's code once so that instruction fetches find it in L2")
    A(f"""
    s_getpc_b64 {s(sT0+2,2)}
    v_lshlrev_b32 v3, 7, v0
    v_min_u32 v3, L_code_end-L_nocpf, v3
    global_load_dword v40, v3, {s(sT0+2,2)}
    L_nocpf:
    """)
    C("---- waves 0..9: load 2500 edges of chunk c (4 per lane)")
    A(f"""
    s_mul_i32 {s(sT0+1)}, {s(sC)}, 10000
    v_add_u32 v2, {s(sT0+1)}, v2
    v_cmp_gt_u32 vcc, 625, v0
    v_lshrrev_b32 v3, 1, v2
    s_mov_b64 exec, vcc
    s_waitcnt lgkmcnt(0)
    global_load_dwordx4 v[8:11], v2, {s(sDST,2)}
    """)
    epoch_load()
    A(f"""
    global_load_dwordx4 v[12:15], v2, {s(sSRC,2)}
    global_load_dwordx2 v[16:17], v3, {s(sE,2)}
    s_barrier
    s_mov_b64 exec, -1
    s_mov_b64 {s(sM,2)}, vcc
    """)
    stamp("b0")
    ids()
    common_scalars()
    A(f"""
    s_cmp_lt_u32 {s(sW)}, 8
    s_cbranch_scc1 L_gset
    v_mov_b32 {v(vSo)}, 0
    """)
    rsetup()
    A("s_branch L_bin")
    A("L_gset:")
    C("GEMM waves 0..7: 16 features (w&3) x row tiles {0,1,2} or {3,4}; fragment, table and xa/xu addresses")
    A(f"""
    v_mov_b32 v24, 0
    s_lshr_b32 {s(sT0)}, {s(sW)}, 2
    s_mul_i32 {s(sT0)}, {s(sT0)}, 3
    s_and_b32 {s(sT0+1)}, {s(sW)}, 3
    s_lshl_b32 {s(sT0+2)}, {s(sT0)}, 12
    s_add_u32 {s(sT0+2)}, {s(sT0+2)}, {XL}
    v_lshrrev_b32 v3, 4, v1
    v_xor_b32 {v(vXa)}, v2, v3
    v_lshlrev_b32 {v(vXa)}, 4, {v(vXa)}
    v_lshl_or_b32 {v(vXa)}, v2, 8, {v(vXa)}
    v_add_u32 {v(vXa)}, {s(sT0+2)}, {v(vXa)}
    v_xor_b32 {v(vXa+1)}, 64, {v(vXa)}
    v_xor_b32 {v(vXa+2)}, 128, {v(vXa)}
    v_xor_b32 {v(vXa+3)}, 192, {v(vXa)}
    v_bfe_u32 {v(vSo)}, v1, 3, 2
    v_xor_b32 {v(vSo)}, {s(sT0+1)}, {v(vSo)}
    v_and_b32 {v(vWa)}, 3, v1
    v_lshlrev_b32 {v(vWa)}, 3, {v(vWa)}
    v_lshl_or_b32 {v(vWa)}, {v(vSo)}, 5, {v(vWa)}
    v_bfe_u32 {v(vSo)}, v1, 2, 2
    v_lshl_or_b32 {v(vWa)}, {v(vSo)}, 7, {v(vWa)}
    v_lshl_or_b32 {v(vWa)}, v3, 10, {v(vWa)}
    v_add_u32 {v(vWa)}, {WA}, {v(vWa)}
    v_lshlrev_b32 v3, 4, v3
    v_lshl_or_b32 {v(vSo)}, v2, 15, v3
    s_lshl_b32 {s(sT0+1)}, {s(sT0+1)}, 6
    s_mul_i32 {s(sT0+2)}, {s(sT0)}, {16*XAS}
    s_add_u32 {s(sT0+2)}, {s(sT0+2)}, {s(sT0+1)}
    s_add_u32 {s(sT0+2)}, {s(sT0+2)}, {XAU}
    v_mul_u32_u24 {v(vXo)}, {XAS}, v2
    v_add3_u32 {v(vXo)}, {v(vXo)}, v3, {s(sT0+2)}
    s_lshl_b32 {s(sT0)}, {s(sT0)}, 19
    s_add_u32 {s(sGO)}, {s(sSL)}, {s(sB256)}
    s_add_u32 {s(sGO)}, {s(sGO)}, {s(sT0+1)}
    s_add_u32 {s(sGO)}, {s(sGO)}, {s(sT0)}
    L_bin:
    """)
    C("bin the edges whose dst&127 lies in this workgroup's quarter; other lanes address past the end of LDS")
    A(f"""
    s_mul_i32 {s(sT0)}, {s(sQB)}, -128
    s_movk_i32 {s(sT0+1)}, 0x1fc
    s_mov_b32 {s(sT0+2)}, 0xffff0000
    v_mov_b32 v18, 8
    v_mov_b32 v19, {CBASE}
    s_mov_b64 exec, {s(sM,2)}
    s_setprio 1
    s_waitcnt vmcnt(2)
    """)
    stamp("edge")
    for i in range(4):
        A(f"""
        v_lshl_add_u32 {v(20+i)}, {v(8+i)}, 2, {s(sT0)}
        v_and_or_b32 {v(20+i)}, {v(20+i)}, {s(sT0+1)}, v19
        ds_add_rtn_u32 {v(20+i)}, {v(20+i)}, v18 offset:384
        """)
    for i in range(4):
        A(f"v_lshrrev_b32 v19, 7, {v(8+i)}")
        A(f"v_lshl_or_b32 {v(8+i)}, {v(8+i)}, 7, v19")
    A(f"""
    s_waitcnt vmcnt(0)
    v_lshl_or_b32 v12, v16, 16, v12
    v_and_or_b32 v13, v16, {s(sT0+2)}, v13
    v_lshl_or_b32 v14, v17, 16, v14
    v_and_or_b32 v15, v17, {s(sT0+2)}, v15
    s_waitcnt lgkmcnt(0)
    """)
    for i in range(4):
        A(f"ds_write2_b32 {v(20+i)}, {v(12+i)}, {v(8+i)} offset0:0 offset1:1")
    A("s_setprio 0")
    A("s_mov_b64 exec, -1")
    stamp("bin")
    A(f"""
    s_cmp_ge_u32 {s(sW)}, 8
    s_cbranch_scc1 L_rb1
    """)
    tagconsts()
    consts(24, 25)
    A(f"""
    s_waitcnt lgkmcnt(0)
    s_cmp_ge_u32 {s(sW)}, 4
    s_barrier
    """)
    stamp("b1")
    def rdW(st, base):
        for m in range(2):
            for hh in range(2):
                A(f"ds_read_b64_tr_b16 {v(WF+16*m+4*st+2*hh,2)}, {v(vWa)} offset:{base+m*16384+st*4096+hh*512}")
    def rdX(t, st):
        A(f"ds_read_b128 {v(XF+16*t+4*st,4)}, {v(vXa+st)} offset:{t*4096}")
    def mm1(t, st, m):
        acc = v(AC+8*t+4*m, 4)
        A(f"v_mfma_f32_16x16x32_bf16 {acc}, {v(WF+16*m+4*st,4)}, {v(XF+16*t+4*st,4)}, {acc if st else 0}")
    def mm(t, st):
        mm1(t, st, 0); mm1(t, st, 1)
    def epi1(t):
        a = AC + 8*t
        ops = [f"v_mul_f32 {v(a+k)}, {s(sL2E)}, {v(a+k)}" for k in range(4)]
        ops += [f"v_cvt_pk_bf16_f32 {v(a+k)}, {v(a+2*k)}, {v(a+2*k+1)}" for k in range(4)]
        ops += [f"buffer_store_dwordx4 {v(a,4)}, {v(vSo)}, {s(sWS,4)}, {s(sGO)} offen sc1"]
        return ops
    nxt = f"s_add_u32 {s(sGO)}, {s(sGO)}, {16*32768}"
    def epi2(t):
        a = AC + 8*t
        for k in range(4): A(f"v_mul_f32 {v(a+k)}, {s(sL2E)}, {v(a+k)}")
        A(f"ds_write_b128 {v(vXo)}, {v(a+4,4)} offset:{t*16*XAS+256}")
        A(f"ds_write_b128 {v(vXo)}, {v(a,4)} offset:{t*16*XAS}")
    def inter(t, ops):
        k = 0
        for st in (2, 3):
            for m in range(2):
                mm1(t, st, m)
                for o in ops[k:k+3]: A(o)
                k += 3
    C("---- GEMM 1: table rows [-log2e * x@B | x@V] in bf16, written through to memory")
    for st in range(3):
        rdW(st, 32768); rdX(0, st)
    A("s_waitcnt lgkmcnt(10)")
    rdW(3, 32768); rdX(0, 3)
    A("s_waitcnt lgkmcnt(10)")
    for st in range(4): rdX(1, st)
    mm(0, 0); mm(0, 1)
    A("s_waitcnt lgkmcnt(9)"); mm(0, 2)
    A("s_waitcnt lgkmcnt(4)"); mm(0, 3)
    A("s_waitcnt lgkmcnt(0)")
    A("s_cbranch_scc1 L_nox2")
    for st in range(4): rdX(2, st)
    A("L_nox2:")
    mm(1, 0); mm(1, 1)
    inter(1, epi1(0))
    A("s_cbranch_scc1 L_two_g1")
    A(nxt)
    A("s_waitcnt lgkmcnt(0)")
    mm(2, 0); mm(2, 1)
    inter(2, epi1(1))
    A(nxt)
    A("s_nop 2")
    for o in epi1(2): A(o)
    A("s_branch L_bm")
    A("L_two_g1:")
    A(nxt)
    A("s_setprio 1")
    A("s_nop 0")
    for o in epi1(1): A(o)
    A("s_setprio 0")
    A("L_bm:")
    stamp("g1")
    A("s_barrier")
    C("---- GEMM 2: xa = -log2e * x@A and xu = x@U (f32) into LDS; two-tile waves first wait for their stores")
    def b2():
        slotaddr()
        A("s_waitcnt vmcnt(0)")
        stamp("ack")
        A(f"""
        s_barrier
        buffer_load_dwordx4 {v(vU,4)}, {v(vSl)}, {s(sWS,4)}, {s(sSO)} offen sc1
        """)
    for st in range(3): rdW(st, 0)
    A(f"s_cmp_lt_u32 {s(sW)}, 4")
    A("s_cbranch_scc1 L_g2go")
    b2()
    A("L_g2go:")
    A("s_waitcnt lgkmcnt(8)"); mm(0, 0)
    rdW(3, 0)
    A("s_waitcnt lgkmcnt(8)"); mm(0, 1)
    A("s_waitcnt lgkmcnt(4)"); mm(0, 2)
    A("s_waitcnt lgkmcnt(0)"); mm(0, 3)
    for st in range(4): mm(1, st)
    A("s_cbranch_scc0 L_two_g2")
    for st in range(4): mm(2, st)
    A("L_two_g2:")
    epi2(0)
    A("s_nop 1")
    epi2(1)
    A("s_cbranch_scc0 L_done_g2")
    epi2(2)
    b2()
    A("L_done_g2:")
    stamp("g2")
    A(f"s_mov_b32 {s(sPW)}, 0")
    lateconsts()
    A("s_branch L_slotchk")

    A("L_dmawave:")
    C("---- waves 12..15: x rows and weight halves straight into LDS (source-swizzled)")
    ids()
    A(f"""
    v_and_b32 v3, 255, v0
    v_lshrrev_b32 v5, 3, v3
    v_lshrrev_b32 v6, 4, v3
    v_and_b32 v4, 2, v5
    v_and_or_b32 v4, v6, 4, v4
    v_xor_b32 v4, v4, v0
    v_and_b32 v4, 7, v4
    v_lshl_or_b32 v4, v4, 4, {s(sF128)}
    v_lshl_or_b32 v28, v5, 8, v4
    v_xor_b32 v5, v6, v0
    v_and_b32 v5, 15, v5
    v_lshl_or_b32 v5, v5, 4, {s(sB256)}
    v_lshl_or_b32 v16, v6, 15, v5
    s_lshl_b32 {s(sT0+6)}, {s(sW)}, 10
    s_waitcnt lgkmcnt(0)
    """)
    if not EPL: epoch_load()
    cnt = dict.fromkeys("XBVAU", 0)
    info = dict(X=(XL, 16*32768, 0, sX, 16), B=(WB, 8192, 32768, sG, 28), V=(WV, 8192, 0, sV, 28), A=(WA, 8192, 0, sG, 28), U=(WU, 8192, 0, sU, 28))
    for ch in DORD:
        if ch == "|":
            A("s_barrier"); stamp("b0")
            if EPL: epoch_load()
            continue
        if ch in "0123":
            A(f"s_setprio {ch}"); continue
        if ch == ".":
            common_scalars(); rsetup(); continue
        a = cnt[ch]; cnt[ch] += 1
        lds, gstep, g0, sb, vb = info[ch]
        A(f"s_add_u32 m0, {s(sT0+6)}, {(lds - 12*1024 + a*4096) & 0xffffffff:#x}")
        A(f"v_add_u32 v17, {g0 + a*gstep}, {v(vb)}")
        if ch == "X" and a == 4: A(f"v_min_u32 v17, {N*256-16}, v17")
        A(f"global_load_lds_dwordx4 v17, {s(sb,2)}")
    assert cnt == dict(X=5, B=4, V=4, A=4, U=4)
    stamp("bin")
    A("s_branch L_rb1")

    A("L_initwave:")
    C("---- waves 10, 11: bin counters, empty lists, list counters, c = -log2e * g_w[256]")
    A(f"""
    v_and_b32 v1, 31, v0
    v_mul_u32_u24 v12, {ISTR}, v1
    v_add_u32 v12, {IMG}, v12
    v_lshlrev_b32 v13, 2, v1
    v_add_u32 v13, {CBASE}, v13
    ds_write_b32 v13, v12 offset:384
    v_lshlrev_b32 v13, 3, v1
    v_add_u32 v14, {IMG + 12288}, v13
    ds_write_b64 v14, v[8:9]
    s_and_b32 {s(sT0)}, s2, 1
    s_lshl_b32 {s(sT0)}, {s(sT0)}, 7
    s_add_u32 {s(sT0)}, {s(sT0)}, 65536
    v_and_b32 v3, 15, v0
    v_lshl_add_u32 v3, v3, 3, {s(sT0)}
    s_waitcnt lgkmcnt(0)
    global_load_dwordx2 v[16:17], v3, {s(sG,2)}
    s_barrier
    """)
    stamp("b0")
    epoch_load()
    A(f"""
    ds_write_b64 v13, v[8:9] offset:{ONES}
    v_mov_b32 v20, {DUMMY:#x}
    v_mov_b32 v21, v20
    v_mov_b64 v[22:23], v[20:21]
    v_add_u32 v12, {LIST - 640*16}, v2
    """)
    for a in range(16):
        A(f"ds_write_b128 v12, v[20:23] offset:{a*2048}")
    A(f"""
    v_subrev_u32 v3, 640, v0
    v_mul_u32_u24 v5, {LSTR}, v3
    v_add_u32 v5, {LIST + 4*NCAP}, v5
    v_subrev_u32 v4, 4, v5
    v_lshlrev_b32 v6, 3, v3
    v_mov_b64 v[10:11], 0
    v_cmp_gt_u32 vcc, 80, v3
    s_mov_b64 exec, vcc
    ds_write_b64 v6, v[4:5] offset:{CNT2}
    ds_write_b64 v6, v[10:11] offset:{HIST}
    s_mov_b64 exec, -1
    """)
    assert CNT2 + 640 == HIST and HIST + 640 >= FLAG + 4 and HIST + 640 <= CVEC
    ids()
    common_scalars()
    rsetup()
    A(f"""
    v_lshlrev_b32 v3, 4, v2
    s_waitcnt vmcnt(0)
    v_lshlrev_b32 v28, 16, v16
    v_and_b32 v29, 0xffff0000, v16
    v_lshlrev_b32 v30, 16, v17
    v_and_b32 v31, 0xffff0000, v17
    v_pk_mul_f32 v[28:29], v[28:29], {s(sL2E,2)}
    v_pk_mul_f32 v[30:31], v[30:31], {s(sL2E,2)}
    ds_write_b128 v3, v[28:31] offset:{CVEC}
    L_rb1:
    """)
    C("---- waves 8..13: pack 3 records + node bytes + tag per 16-B unit and send them to the owners of the bins")
    A(f"""
    s_setprio 2
    s_waitcnt lgkmcnt(0)
    v_mad_u32_u24 v26, v26, 37, {s(sTAG)}
    s_cmp_ge_u32 {s(sW)}, 14
    s_waitcnt vmcnt(8)
    s_barrier
    """)
    stamp("b1")
    A(f"""
    s_cbranch_scc1 L_norec
    ds_read_b64 v[14:15], v7 offset:384
    ds_read_b64 v[8:9], v5
    ds_read_b64 v[16:17], v25 offset:128
    ds_read_b64 v[12:13], v5 offset:64
    ds_read_b64 v[18:19], v25 offset:64
    ds_read_b64 v[10:11], v5 offset:128
    ds_read_b64 v[20:21], v25
    s_waitcnt lgkmcnt(4)
    v_cmp_gt_u32 vcc, v14, v6
    v_cmp_gt_u32 {s(sM,2)}, v15, v27
    v_add_u32 v14, v14, v15
    v_cmp_gt_u32 {s(sM+2,2)}, v14, v4
    v_and_b32 v8, v8, v16
    v_and_b32 v17, v9, v17
    s_or_b64 vcc, vcc, {s(sM,2)}
    s_waitcnt lgkmcnt(0)
    v_and_b32 v13, v13, v19
    v_and_b32 v11, v11, v21
    s_or_b64 vcc, vcc, {s(sM+2,2)}
    v_perm_b32 v13, v13, v17, {s(sPM)}
    v_perm_b32 v11, v26, v11, {s(sPM+1)}
    v_and_b32 v9, v12, v18
    v_and_b32 v10, v10, v20
    v_or_b32 v11, v11, v13
    s_cbranch_scc1 L_ovf
    L_noovf:
    buffer_store_dwordx4 v[8:11], v24, {s(sWS,4)}, {s(sRO)} offen sc1
    L_norec:
    s_setprio 0
    """)
    stamp("rec")
    tagconsts()
    consts(20, 21)
    A(f"""
    s_cmp_lt_u32 {s(sW)}, 14
    s_waitcnt vmcnt(1)
    s_cbranch_scc1 L_rbm
    s_waitcnt vmcnt(0)
    L_rbm:
    """)
    stamp("g1")
    A("s_barrier")
    lateconsts()
    C("wave 15 raises and polls the flags (wave 14 of workgroup 0 polls the other feature half as well)")
    A(f"""
    s_min_u32 {s(sT0)}, s2, 1
    s_add_u32 {s(sT0)}, {s(sT0)}, 14
    s_cmp_ge_u32 {s(sW)}, {s(sT0)}
    s_cselect_b32 {s(sPW)}, 1, 0
    s_and_b32 {s(sPO)}, s2, {2*NR-1}
    s_sub_u32 {s(sT0)}, 15, {s(sW)}
    s_xor_b32 {s(sPO)}, {s(sPO)}, {s(sT0)}
    s_mul_i32 {s(sPO)}, {s(sPO)}, {RS}
    s_add_u32 {s(sPO)}, {s(sPO)}, {FLAG0}
    """)
    slotaddr()
    A(f"""
    v_mul_u32_u24 v20, {2*RS}, v1
    v_mov_b32 v21, {s(sTAG)}
    s_add_u32 {s(sT0)}, {s(sF128)}, {s(sB)}
    s_lshl_b32 {s(sT0)}, {s(sT0)}, 4
    s_add_u32 {s(sT0)}, {s(sT0)}, {FLAG0}
    """)
    stamp("ack")
    A(f"""
    s_cmp_lg_u32 {s(sW)}, 15
    s_barrier
    buffer_load_dwordx4 {v(vU,4)}, {v(vSl)}, {s(sWS,4)}, {s(sSO)} offen sc1
    s_cbranch_scc1 L_slotchk
    s_mov_b64 exec, {(1 << NR) - 1}
    buffer_store_dword v21, v20, {s(sWS,4)}, {s(sT0)} offen sc1
    s_mov_b64 exec, -1
    s_waitcnt vmcnt(1)
    s_branch L_slotchk1
    L_slotchk:
    s_waitcnt vmcnt(0)
    L_slotchk1:
    """)
    C("---- all waves: check the tags, then append this block's records to per-node lists (two classes of src, from the middle out)")
    def poll_ld():
        A(f"buffer_load_dword {v(vEx)}, v2, {s(sWS,4)}, {s(sPO)} offen sc1")
        A(f"buffer_load_dword {v(vEx+1)}, v2, {s(sWS,4)}, {s(sPO)} offen offset:{64*FS} sc1")
    AD, IN = (12, 13, 15), (25, 26, 3)
    def ins_pre(p):
        ad, inc = AD[p], IN[p]
        A(f"v_cmp_gt_u32_sdwa {s(sM+2*p,2)}, {s(sT0+2)}, {v(vU+3)} src0_sel:DWORD src1_sel:BYTE_{p}")
        A(f"v_lshlrev_b32_sdwa {v(ad)}, v27, {v(vU+3)} dst_sel:DWORD dst_unused:UNUSED_PAD src0_sel:DWORD src1_sel:BYTE_{p}")
        A(f"v_bfe_u32 {v(inc)}, {v(vU+p)}, 7, 1")
        A(f"v_lshl_add_u32 {v(ad)}, {v(inc)}, 2, {v(ad)}")
        A(f"v_lshl_add_u32 {v(inc)}, {v(inc)}, 3, -4")
    def ins_a(p):
        A(f"s_mov_b64 exec, {s(sM+2*p,2)}")
        A(f"ds_add_rtn_u32 {v(AD[p])}, {v(AD[p])}, {v(IN[p])} offset:{CNT2}")
        A("s_mov_b64 exec, -1")
    def ins_w():
        for p in range(3):
            A(f"s_mov_b64 exec, {s(sM+2*p,2)}")
            A(f"ds_write_b32 {v(AD[p])}, {v(vU+p)}")
    A(f"""
    v_cmp_ne_u32_sdwa vcc, {v(vTagB)}, {v(vU+3)} src0_sel:DWORD src1_sel:BYTE_3
    L_slotok:
    v_cmp_eq_u32_sdwa {s(sM+6,2)}, {s(sT0+4)}, {v(vU+3)} src0_sel:DWORD src1_sel:BYTE_0
    v_xor_b32 {v(vU+3)}, {s(sPAR)}, {v(vU+3)}
    """)
    ins_pre(0)
    A("s_cbranch_vccnz L_slotretry")
    stamp("slot")
    ins_a(0); ins_pre(1); ins_a(1); ins_pre(2); ins_a(2)
    A(f"""
    s_cmp_lg_u64 {s(sM+6,2)}, 0
    s_cbranch_scc1 L_mark
    L_nomark:
    s_cmp_lg_u32 {s(sW)}, 0
    s_waitcnt lgkmcnt(0)
    s_barrier
    """)
    stamp("b4")
    A("s_cbranch_scc1 L_nosort")
    C("wave 0: counting sort of the 80 nodes by degree; entry = node | slow<<7 | (63-deg)<<10 | list start<<14")
    A(f"""
    ds_read_b64 v[28:29], v8 offset:{CNT2}
    ds_read_b64 v[30:31], v8 offset:{CNT2+512}
    ds_read_b32 v14, v14 offset:{FLAG}
    s_setprio 3
    s_movk_i32 {s(sT0)}, 256
    s_waitcnt lgkmcnt(1)
    v_sub_u32 v29, v28, v29
    v_sub_u32 v31, v30, v31
    v_add_u32 v29, {s(sT0)}, v29
    v_add_u32 v31, {s(sT0)}, v31
    v_max_i32 v29, 0, v29
    v_max_i32 v31, 0, v31
    ds_add_rtn_u32 v32, v29, v10 offset:{HIST}
    s_mov_b64 exec, 0xffff
    ds_add_rtn_u32 v33, v31, v10 offset:{HIST}
    s_mov_b64 exec, -1
    ds_read_b32 v35, v9 offset:{HIST}
    v_lshl_or_b32 v36, v29, 8, v1
    v_lshl_or_b32 v37, v31, 8, v11
    v_lshl_or_b32 v28, v28, 14, v36
    v_lshl_or_b32 v30, v30, 14, v37
    s_waitcnt lgkmcnt(0)
    v_add_u32_dpp v34, v35, v35 row_shr:1 row_mask:0xf bank_mask:0xf bound_ctrl:1
    s_nop 1
    v_add_u32_dpp v34, v34, v34 row_shr:2 row_mask:0xf bank_mask:0xf bound_ctrl:1
    s_nop 1
    v_add_u32_dpp v34, v34, v34 row_shr:4 row_mask:0xf bank_mask:0xf bound_ctrl:1
    s_nop 1
    v_add_u32_dpp v34, v34, v34 row_shr:8 row_mask:0xf bank_mask:0xf bound_ctrl:1
    s_nop 1
    v_add_u32_dpp v34, v34, v34 row_bcast:15 row_mask:0xa bank_mask:0xf
    s_nop 1
    v_add_u32_dpp v34, v34, v34 row_bcast:31 row_mask:0xc bank_mask:0xf
    v_sub_u32 v34, v34, v35
    ds_bpermute_b32 v29, v29, v34
    ds_bpermute_b32 v31, v31, v34
    v_readlane_b32 {s(sT0)}, v34, {63-NCAP}
    v_readfirstlane_b32 {s(sT0+1)}, v14
    """)
    ins_w()
    A(f"""
    s_mov_b64 exec, -1
    s_or_b32 {s(sT0)}, {s(sT0)}, {s(sT0+1)}
    s_cselect_b32 {s(sT0)}, 0x80, 0
    v_or_b32 v28, {s(sT0)}, v28
    v_or_b32 v30, {s(sT0)}, v30
    s_waitcnt lgkmcnt(0)
    v_add_lshl_u32 v29, v29, v32, 2
    v_add_lshl_u32 v31, v31, v33, 2
    ds_write_b32 v29, v28 offset:{ORDER}
    s_mov_b64 exec, 0xffff
    ds_write_b32 v31, v30 offset:{ORDER}
    s_mov_b64 exec, -1
    s_setprio 0
    s_branch L_sorted
    L_nosort:
    s_cmp_eq_u32 {s(sPW)}, 0
    s_cbranch_scc1 L_nopoll0
    v_lshlrev_b32 v2, 4, v1
    """)
    poll_ld()
    A("L_nopoll0:")
    ins_w()
    C("touch a share of the first class of table rows so that L2 starts filling during the sort")
    A(f"""
    s_mov_b64 exec, {(1 << NPF) - 1}
    buffer_load_dword {v(vDum)}, {v(vPf)}, {s(sWS,4)}, {s(sSL)} offen sc1
    s_mov_b64 exec, -1
    s_cmp_lt_u32 {s(sW)}, 12
    s_cbranch_scc1 L_sorted
    s_setprio 3
    L_sorted:
    s_waitcnt lgkmcnt(0)
    """)
    stamp("sort")
    LO = 4
    A("s_barrier")
    A("L_batch:")
    C("---- one batch = 4 nodes of similar degree, 16 lanes x 4 features each")
    A(f"""
    ds_read_b32 {v(vNode)}, {v(vOa)} offset:{ORDER}
    ds_read_u16 {v(vL+1)}, {v(vOa+1)} offset:{ORDER+2}
    s_waitcnt lgkmcnt(1)
    v_lshrrev_b32 {v(vL)}, 16, {v(vNode)}
    v_lshlrev_b32 {v(vL)}, 2, {v(vL)}
    v_readfirstlane_b32 {s(sTR)}, {v(vNode)}
    """)
    for k in range(P):
        A(f"ds_read_u16 {v(slot(k)+2)}, {v(vL)} offset:{LO+4*k}")
    A(f"""
    s_cmp_ge_u32 {s(sBA)}, 16
    s_cbranch_scc1 L_go
    s_cmp_eq_u32 {s(sPW)}, 0
    s_cbranch_scc1 L_b5
    s_waitcnt vmcnt(1)
    s_branch L_poll1
    L_poll:
    """)
    poll_ld()
    A(f"""
    s_add_u32 {s(sRT)}, {s(sRT)}, 1
    s_cmp_ge_u32 {s(sRT)}, {SPIN}
    s_cbranch_scc1 L_pollok
    s_waitcnt vmcnt(0)
    L_poll1:
    v_cmp_ne_u32 vcc, {s(sTAG)}, {v(vEx)}
    v_cmp_ne_u32 {s(sM,2)}, {s(sTAG)}, {v(vEx+1)}
    s_or_b64 vcc, vcc, {s(sM,2)}
    s_cbranch_scc1 L_poll
    L_pollok:
    s_cmp_lg_u32 {s(sW)}, 14
    s_cbranch_scc1 L_b5
    s_barrier
    """)
    C("every workgroup has read the epoch and flagged: advance it for the next launch")
    A(f"""
    s_mov_b64 exec, 1
    v_mov_b32 v3, {s(sTAG)}
    buffer_store_dword v3, off, {s(sWS,4)}, s3 sc1
    s_mov_b64 exec, -1
    s_branch L_go
    L_b5:
    s_barrier
    """)
    stamp("b5")
    if DIAG:
        A(f"s_lshl_b32 {s(sST+18)}, {s(sRT+1)}, 16")
        A(f"s_or_b32 {s(sST+18)}, {s(sST+18)}, {s(sRT)}")
        A(f"s_or_b32 {s(sST+18)}, {s(sST+18)}, 0x80000000")
    A("L_go:")
    A("s_waitcnt lgkmcnt(0)")
    for k in range(P):
        A(f"buffer_load_dwordx4 {v(slot(k)+2,4)}, {v(slot(k)+2,2)}, {s(sTAB,4)}, 0 idxen offen sc1")
    A(f"""
    v_lshl_add_u32 {v(vL+1)}, {v(vL+1)}, 2, {v(vOob)}
    v_and_b32 v2, 0x7f, {v(vNode)}
    v_mul_u32_u24 v3, {XAS}, v2
    v_add_u32 v3, v3, {v(vP0+1)}
    ds_read2_b32 {v(vAt+4,2)}, {v(vL+1)} offset0:0 offset1:1
    ds_read2_b32 {v(vAt,2)}, {v(vL+1)} offset0:2 offset1:3
    ds_read_b128 {v(vXA,4)}, v3 offset:{XAU}
    ds_read_b128 {v(vN,4)}, v3 offset:{XAU+256}
    ds_read_u16 {v(vP0)}, {v(vL)} offset:{LO+4*P}
    ds_read_u16 {v(vP0+2)}, {v(vL)} offset:{LO+4*P+4}
    v_lshrrev_b32 {v(vO)}, 1, {v(vP0+1)}
    v_lshl_or_b32 {v(vO)}, v2, 15, {v(vO)}
    s_bitcmp1_b32 {s(sTR)}, 7
    s_cbranch_scc1 L_scan
    s_bfe_u32 {s(sTR)}, {s(sTR)}, 0x6000a
    s_min_u32 {s(sTR)}, {s(sTR)}, {63-P}
    s_sub_u32 {s(sTR)}, {63-P}, {s(sTR)}
    s_lshr_b32 {s(sCNT)}, {s(sTR)}, 1
    """)
    C("waves with more steps left get the higher priority")
    A(f"""
    s_sub_i32 {s(sTH)}, {TH[1]}, {s(sEX)}
    s_setprio 3
    s_cmp_gt_i32 {s(sCNT)}, {s(sTH)}
    s_cbranch_scc1 L_lad
    s_sub_i32 {s(sTH)}, {TH[0]}, {s(sEX)}
    s_setprio 2
    s_cmp_gt_i32 {s(sCNT)}, {s(sTH)}
    s_cbranch_scc1 L_lad
    s_movk_i32 {s(sTH)}, -100
    s_setprio 1
    L_lad:
    """)
    def M1(st):
        a = vAt + 4*(((st-1)//2) % 2)
        A(f"v_mfma_f32_16x16x32_bf16 {v(vT+4*(st%2),4)}, {v(a,4)}, {v(slot(st),4)}, {v(vXA,4)}")
    def M2(st):
        A(f"v_mfma_f32_4x4x4_16b_bf16 {v(vMm+4*(st%2),4)}, {v(vI,2)}, {v(slot(st)+4,2)}, 0")
    def Ld(st):
        A(f"buffer_load_dwordx4 {v(slot(st)+2,4)}, {v(vP0+2*(st%2),2)}, {s(sTAB,4)}, 0 idxen offen sc1")
    A(f"s_waitcnt vmcnt({P-1}) lgkmcnt(0)")
    stamp("first")
    M1(0); M2(0)
    A(f"s_sub_u32 {s(sCNT)}, {s(sCNT)}, 1")
    Ld(P)
    A(f"ds_read_u16 {v(vP0)}, {v(vL)} offset:{LO+4*(P+2)}")
    A("s_nop 1")
    A("s_cbranch_scc1 L_drain0")
    def body(k, drain):
        z = vT + 4*(k % 2); m = vMm + 4*(k % 2)
        last = drain == P
        if drain is None:
            A(f"s_waitcnt vmcnt({P-1}) lgkmcnt({1 + k % 2})")
        elif not last:
            A(f"s_waitcnt vmcnt({P-1-drain})" + (" lgkmcnt(0)" if k % 2 == 0 else ""))
        if not last: M1(k+1)
        A(f"v_exp_f32 {v(vEx)}, {v(z)}")
        A(f"v_exp_f32 {v(vEx+1)}, {v(z+1)}")
        if not last: M2(k+1)
        A(f"v_exp_f32 {v(vEx+2)}, {v(z+2)}")
        A(f"v_exp_f32 {v(vEx+3)}, {v(z+3)}")
        if k % 2 == 0 and (drain is None or drain < P-2):
            A(f"ds_read2_b32 {v(vAt+4*((k//2+1)%2),2)}, {v(vL+1)} offset0:{k+4} offset1:{k+5}")
        for h in range(2):
            A(f"v_pk_fma_f32 {v(vN1+2*h,2)}, {v(m+2*h,2)}, {v(vD+2*h,2)}, {v(vN+2*h,2)}")
        for h in range(2):
            A(f"v_pk_fma_f32 {v(vD+2*h,2)}, {v(vD+2*h,2)}, {v(vEx+2*h,2)}, {v(vD+2*h,2)}")
        for h in range(2):
            A(f"v_pk_fma_f32 {v(vN+2*h,2)}, {v(vN+2*h,2)}, {v(vEx+2*h,2)}, {v(vN1+2*h,2)}")
        if drain is None:
            Ld(k+1+P)
            A(f"ds_read_u16 {v(vP0+2*((k+1)%2))}, {v(vL)} offset:{LO+4*(k+3+P)}")
    A("L_loop:")
    C("per edge: z = xa + xb + e*c and m = hv widened by MFMA; E = 2^z; N/D += m/(1+E) as N = N*E + (m*D + N), D = D*E + D")
    for k in range(P):
        body(k, None)
        if k % 2 == 1:
            if k == P-1:
                A(f"v_lshl_add_u64 {v(vL,2)}, {v(vL,2)}, 0, {s(sINC,2)}")
                A(f"s_cmp_le_i32 {s(sCNT)}, {s(sTH)}")
                A("s_cbranch_scc1 L_lower")
                A("L_lowered:")
            A(f"s_sub_u32 {s(sCNT)}, {s(sCNT)}, 1")
            A(f"s_cbranch_scc1 L_drain{k+1}" if k < P-1 else "s_cbranch_scc0 L_loop")
    for ph in range(0, P, 2):
        A(f"""
        L_drain{ph}:
        s_cmp_lg_u32 {s(sEX)}, 0
        s_cbranch_scc1 L_keep{ph}
        s_setprio 0
        L_keep{ph}:
        s_bitcmp0_b32 {s(sTR)}, 0
        """)
        for i in range(P+1):
            if i == P: A("s_cbranch_scc1 L_loop_done")
            body(ph+i, i)
        if ph < P-2: A("s_branch L_loop_done")
    A("L_loop_done:")
    C("y = N/D; if the running fraction left the safe range (or met a NaN) redo the batch term by term")
    A(f"""
    v_rcp_f32 {v(vEx)}, {v(vD)}
    v_rcp_f32 {v(vEx+1)}, {v(vD+1)}
    v_rcp_f32 {v(vEx+2)}, {v(vD+2)}
    v_rcp_f32 {v(vEx+3)}, {v(vD+3)}
    v_pk_add_f32 {v(vD,2)}, {v(vD,2)}, {v(vD+2,2)}
    v_add_f32 v2, |{v(vN)}|, |{v(vN+1)}|
    v_add_f32 v3, |{v(vN+2)}|, |{v(vN+3)}|
    v_pk_mul_f32 {v(vN,2)}, {v(vN,2)}, {v(vEx,2)}
    v_pk_add_f32 v[2:3], v[2:3], {v(vD,2)}
    v_pk_mul_f32 {v(vN+2,2)}, {v(vN+2,2)}, {v(vEx+2,2)}
    v_add_f32 v2, v2, v3
    v_cmp_ngt_f32 vcc, 0x7b800000, v2
    s_cbranch_vccnz L_safe
    L_silu:
    v_pk_mul_f32 {v(vT,2)}, {v(vN,2)}, {s(sL2E,2)}
    v_pk_mul_f32 {v(vT+2,2)}, {v(vN+2,2)}, {s(sL2E,2)}
    v_exp_f32 {v(vEx)}, {v(vT)}
    v_exp_f32 {v(vEx+1)}, {v(vT+1)}
    v_exp_f32 {v(vEx+2)}, {v(vT+2)}
    v_exp_f32 {v(vEx+3)}, {v(vT+3)}
    v_pk_add_f32 {v(vEx,2)}, {v(vEx,2)}, 1.0 op_sel_hi:[1,0]
    v_pk_add_f32 {v(vEx+2,2)}, {v(vEx+2,2)}, 1.0 op_sel_hi:[1,0]
    v_rcp_f32 {v(vEx)}, {v(vEx)}
    v_rcp_f32 {v(vEx+1)}, {v(vEx+1)}
    v_rcp_f32 {v(vEx+2)}, {v(vEx+2)}
    v_rcp_f32 {v(vEx+3)}, {v(vEx+3)}
    v_pk_mul_f32 {v(vN,2)}, {v(vN,2)}, {v(vEx,2)}
    v_pk_mul_f32 {v(vN+2,2)}, {v(vN+2,2)}, {v(vEx+2,2)}
    v_cvt_pk_bf16_f32 {v(vN1)}, {v(vN)}, {v(vN+1)}
    v_cvt_pk_bf16_f32 {v(vN1+1)}, {v(vN+2)}, {v(vN+3)}
    s_cmp_eq_u32 {s(sEX)}, 0
    buffer_store_dwordx2 {v(vN1,2)}, {v(vO)}, {s(sOUT,4)}, {s(sOO)} offen sc1
    s_cbranch_scc1 L_fin
    """)
    C("waves 12..15 run a second batch")
    A(f"""
    s_add_u32 {s(sBA)}, {s(sBA)}, 4
    s_mov_b32 {s(sEX)}, 0
    v_add_u32 {v(vOa)}, 64, {v(vOa)}
    v_add_u32 {v(vOa+1)}, 64, {v(vOa+1)}
    """)
    batch_init()
    A("s_branch L_batch")
    A("L_fin:")
    if DIAG:
        stamp("end")
        A("s_waitcnt vmcnt(0)")
        stamp("drain")
        A(f"""
        s_mov_b64 exec, 1
        s_lshl4_add_u32 {s(sT0)}, s2, {s(sW)}
        s_lshl_b32 {s(sT0)}, {s(sT0)}, 6
        s_add_u32 {s(sT0)}, {s(sT0)}, {STAMP0}
        """)
        for k in range(10):
            A(f"v_mov_b32 v2, {s(sST+2*k)}")
            A(f"buffer_store_dword v2, off, {s(sWS,4)}, {s(sT0)} offset:{4*k}")
    A(f"""
    L_end:
    s_endpgm
    L_lower:
    s_sub_i32 {s(sT0)}, {TH[0]}, {s(sEX)}
    s_cmp_eq_i32 {s(sT0)}, {s(sTH)}
    s_cselect_b32 {s(sTH)}, -100, {s(sT0)}
    s_setprio 2
    s_cbranch_scc0 L_lowered
    s_setprio 1
    s_branch L_lowered
    L_slotretry:
    buffer_load_dwordx4 {v(vU,4)}, {v(vSl)}, {s(sWS,4)}, {s(sSO)} offen sc1
    s_add_u32 {s(sRT+1)}, {s(sRT+1)}, 1
    s_cmp_lt_u32 {s(sRT+1)}, {SPIN}
    s_cbranch_scc1 L_slotchk
    s_waitcnt vmcnt(0)
    v_mov_b32 {v(vU+3)}, -1
    s_mov_b64 vcc, 0
    s_branch L_slotok
    L_code_end:
    """)
    C("---- rare paths.  A bin that did not fit: tell its owners (and this workgroup) to scan the edge list instead")
    A(f"""
    L_mark:
    ds_write_b32 v14, v27 offset:{FLAG}
    s_branch L_nomark
    L_ovf:
    v_mov_b32 v11, 0xfefefe
    v_mov_b32 v12, 0
    ds_write_b32 v12, v11 offset:{FLAG}
    v_lshl_or_b32 v11, v26, 24, v11
    s_branch L_noovf
    """)
    def safe_step():
        d = vDAT + 2
        A(f"""
        buffer_load_dwordx4 {v(d,4)}, {v(vP0,2)}, {s(sTAB,4)}, 0 idxen offen sc1
        v_pk_fma_f32 {v(vT,2)}, {v(vEe,2)}, {v(vC,2)}, {v(vXA,2)} op_sel_hi:[0,1,1]
        v_pk_fma_f32 {v(vT+2,2)}, {v(vEe,2)}, {v(vC+2,2)}, {v(vXA+2,2)} op_sel_hi:[0,1,1]
        s_waitcnt vmcnt(0)
        v_lshlrev_b32 {v(vN1)}, 16, {v(d)}
        v_and_b32 {v(vN1+1)}, 0xffff0000, {v(d)}
        v_lshlrev_b32 {v(vN1+2)}, 16, {v(d+1)}
        v_and_b32 {v(vN1+3)}, 0xffff0000, {v(d+1)}
        v_pk_add_f32 {v(vT,2)}, {v(vT,2)}, {v(vN1,2)}
        v_pk_add_f32 {v(vT+2,2)}, {v(vT+2,2)}, {v(vN1+2,2)}
        v_lshlrev_b32 {v(vN1)}, 16, {v(d+2)}
        v_and_b32 {v(vN1+1)}, 0xffff0000, {v(d+2)}
        v_lshlrev_b32 {v(vN1+2)}, 16, {v(d+3)}
        v_and_b32 {v(vN1+3)}, 0xffff0000, {v(d+3)}
        """)
        for k in range(4): A(f"v_exp_f32 {v(vEx+k)}, {v(vT+k)}")
        A(f"v_pk_add_f32 {v(vEx,2)}, {v(vEx,2)}, 1.0 op_sel_hi:[1,0]")
        A(f"v_pk_add_f32 {v(vEx+2,2)}, {v(vEx+2,2)}, 1.0 op_sel_hi:[1,0]")
        for k in range(4): A(f"v_rcp_f32 {v(vEx+k)}, {v(vEx+k)}")
        A(f"v_pk_fma_f32 {v(vN,2)}, {v(vN1,2)}, {v(vEx,2)}, {v(vN,2)}")
        A(f"v_pk_fma_f32 {v(vN+2,2)}, {v(vN1+2,2)}, {v(vEx+2,2)}, {v(vN+2,2)}")
    A("L_safe:")
    C("term-by-term sum over the lists: y = xu + sum m / (1 + 2^z)")
    A(f"""
    v_and_b32 v2, 0x7f, {v(vNode)}
    v_mul_u32_u24 v2, {XAS}, v2
    v_add_u32 v2, v2, {v(vP0+1)}
    ds_read_b128 {v(vN,4)}, v2 offset:{XAU+256}
    ds_read_b128 {v(vC,4)}, {v(vP0+1)} offset:{CVEC}
    v_lshrrev_b32 {v(vL)}, 16, {v(vNode)}
    v_lshlrev_b32 {v(vL)}, 2, {v(vL)}
    s_add_u32 {s(sT0)}, {s(sTR)}, {P}
    L_safe_loop:
    ds_read_b32 v2, {v(vL)} offset:{LO}
    v_add_u32 {v(vL)}, 4, {v(vL)}
    s_waitcnt lgkmcnt(0)
    v_and_b32 {v(vP0)}, 0xffff, v2
    v_and_b32 {v(vEe)}, 0xffff0000, v2
    """)
    safe_step()
    A(f"""
    s_sub_u32 {s(sT0)}, {s(sT0)}, 1
    s_cmp_lg_u32 {s(sT0)}, 0
    s_cbranch_scc1 L_safe_loop
    s_branch L_silu
    L_scan:
    """)
    C("any degree, any edge order: walk the whole edge list and add the terms of this batch's nodes")
    A(f"""
    ds_read_b128 {v(vC,4)}, {v(vP0+1)} offset:{CVEC}
    s_waitcnt lgkmcnt(0)
    v_and_b32 v108, 0x7f, {v(vNode)}
    v_lshlrev_b32 v108, 7, v108
    v_add_u32 v108, {s(sB)}, v108
    v_lshlrev_b32 v104, 2, v1
    v_lshlrev_b32 v105, 1, v1
    s_mov_b32 {s(sT0)}, 0
    L_scan_outer:
    global_load_dword v106, v104, {s(sDST,2)}
    global_load_dword v107, v104, {s(sSRC,2)}
    global_load_ushort v109, v105, {s(sE,2)}
    v_add_u32 v104, 256, v104
    v_add_u32 v105, 128, v105
    s_waitcnt vmcnt(0)
    v_and_b32 v2, 127, v106
    v_cmp_eq_u32 {s(sM,2)}, {s(sB)}, v2
    v_lshlrev_b32 v109, 16, v109
    L_scan_inner:
    s_cmp_eq_u64 {s(sM,2)}, 0
    s_cbranch_scc1 L_scan_next
    s_ff1_i32_b64 {s(sT0+1)}, {s(sM,2)}
    s_bitset0_b64 {s(sM,2)}, {s(sT0+1)}
    v_readlane_b32 {s(sT0+2)}, v106, {s(sT0+1)}
    v_readlane_b32 {s(sT0+3)}, v107, {s(sT0+1)}
    v_readlane_b32 {s(sT0+4)}, v109, {s(sT0+1)}
    s_nop 1
    v_cmp_eq_u32 vcc, {s(sT0+2)}, v108
    s_and_b64 exec, vcc, vcc
    s_cbranch_scc0 L_scan_skip
    v_mov_b32 {v(vP0)}, {s(sT0+3)}
    v_mov_b32 {v(vEe)}, {s(sT0+4)}
    """)
    safe_step()
    A(f"""
    L_scan_skip:
    s_mov_b64 exec, -1
    s_branch L_scan_inner
    L_scan_next:
    s_add_u32 {s(sT0)}, {s(sT0)}, 1
    s_cmp_lt_u32 {s(sT0)}, {E//64}
    s_cbranch_scc1 L_scan_outer
    s_branch L_silu
    """)

A('.amdgcn_target "amdgcn-amd-amdhsa--gfx950"')
A(".text")
A(f".globl {NAME}_kernel")
A(f".type {NAME}_kernel,@function")
kernel()
A('.section .rodata,"a"')
A(".p2align 6")
A(f".amdhsa_kernel {NAME}_kernel")
A(f""".amdhsa_next_free_vgpr 128
.amdhsa_next_free_sgpr {102 if DIAG else SG}
.amdhsa_accum_offset 128
.amdhsa_group_segment_fixed_size 0
.amdhsa_kernarg_size 80
.amdhsa_user_sgpr_count 2
.amdhsa_user_sgpr_kernarg_segment_ptr 1
.amdhsa_system_sgpr_workgroup_id_x 1
.end_amdhsa_kernel""")
head = open("cdna_kernels/" + NAME + ".s.ref").read().split("\n")
head = [l for l in head if l.startswith(";") and "@launch" not in l and "launch geometry" not in l and "grid=ceil" not in l]
head.append(f"; @launch grid=(256,1,1) block=(1024,1,1) lds={LDSZ}")
doc = """;
; The epoch word in d_ws only tells this launch's hand-offs from an earlier launch's."""
open(sys.argv[1], "w").write("\n".join(head) + "\n" + doc + "\n" + A.text())
```
